```python
import torch

def _softmax(x, axis=-1):
    return torch.softmax(x, dim=axis)
def _gelu(x):
    return torch.nn.functional.gelu(x, approximate="tanh")
def _silu(x):
    return torch.nn.functional.silu(x)
def _sigmoid(x):
    return torch.sigmoid(x)
def _layernorm(x, axis=-1, eps=1e-5):
    m = x.mean(dim=axis, keepdim=True)
    v = x.var(dim=axis, keepdim=True, unbiased=False)
    return (x - m) / torch.sqrt(v + eps)
def _scatter_add(tgt, idx, src, axis=0):
    return tgt.clone().index_add_(axis, idx, src)
def _segment_sum(src, seg, n):
    out = torch.zeros((n,) + src.shape[1:], dtype=src.dtype)
    return out.index_add_(0, seg, src)
def _pad(x, pw):
    flat = tuple(v for pair in reversed(pw) for v in pair)
    return torch.nn.functional.pad(x, flat)

kernel_name = 'concat_heads__gqa_block_cached__sliding_block_cached__decode'

def setup_inputs():

    _w = (lambda a: (lambda t: t.to(torch.bfloat16) if t.is_floating_point() else t)(torch.as_tensor(a)))
    def _A_setup():
        B, Sq, D = 4, 1, 1024
        Hq, Hkv, Sk, Dh = 32, 4, 8192, 128
        assert Hq % Hkv == 0, (Hq, Hkv)
        return {
            "x": _w((lambda *s: torch.randn(*s, dtype=torch.bfloat16) * 0.8)(B, Sq, D)),
            "k_cache": _w((lambda *s: torch.randn(*s, dtype=torch.bfloat16) * 1.6)(B, Hkv, Sk, Dh)),
            "v_cache": _w((lambda *s: torch.randn(*s, dtype=torch.bfloat16) * 0.2)(B, Hkv, Sk, Dh)),
            "wq": _w((lambda *s: torch.randn(*s, dtype=torch.bfloat16) * 1.6)(D, Hq * Dh) * (D ** -0.5)),
            "wo": _w((lambda *s: torch.randn(*s, dtype=torch.bfloat16) * 0.2)(Hq * Dh, D) * ((Hq * Dh) ** -0.5)),
        }
    _A_in = _A_setup()

    def _B_setup():
        B, Sq, D = 4, 1, 1024
        Hq, Hkv, Sk, Dh = 32, 4, 8192, 128
        assert Hq % Hkv == 0, (Hq, Hkv)
        return {
            "x": _w((lambda *s: torch.randn(*s, dtype=torch.bfloat16) * 0.8)(B, Sq, D)),
            "k_cache": _w((lambda *s: torch.randn(*s, dtype=torch.bfloat16) * 1.6)(B, Hkv, Sk, Dh)),
            "v_cache": _w((lambda *s: torch.randn(*s, dtype=torch.bfloat16) * 0.2)(B, Hkv, Sk, Dh)),
            "wq": _w((lambda *s: torch.randn(*s, dtype=torch.bfloat16) * 1.6)(D, Hq * Dh) * (D ** -0.5)),
            "wo": _w((lambda *s: torch.randn(*s, dtype=torch.bfloat16) * 0.2)(Hq * Dh, D) * ((Hq * Dh) ** -0.5)),
        }
    _B_in = _B_setup()

    return {
        "A_x": _A_in["x"],
        "A_k_cache": _A_in["k_cache"],
        "A_v_cache": _A_in["v_cache"],
        "A_wq": _A_in["wq"],
        "A_wo": _A_in["wo"],
        "B_x": _B_in["x"],
        "B_k_cache": _B_in["k_cache"],
        "B_v_cache": _B_in["v_cache"],
        "B_wq": _B_in["wq"],
        "B_wo": _B_in["wo"],
    }

def reference(A_x, A_k_cache, A_v_cache, A_wq, A_wo, B_x, B_k_cache, B_v_cache, B_wq, B_wo):
    def _A_ref(x, k_cache, v_cache, wq, wo):
        B, Sq, D = x.shape
        Hq, Dh = 32, 128
        Hkv = k_cache.shape[1]
        rep = Hq // Hkv
        q = (lambda x, *d: x.permute(*d))((x @ wq).reshape(B, Sq, Hq, Dh), 0, 2, 1, 3)
        k = (lambda x, n, axis: torch.repeat_interleave(x, n, dim=axis))(k_cache, rep, axis=1)
        v = (lambda x, n, axis: torch.repeat_interleave(x, n, dim=axis))(v_cache, rep, axis=1)
        scores = torch.einsum("bhqd,bhkd->bhqk", q, k) * (Dh ** -0.5)
        p = _softmax(scores, axis=-1)
        o = torch.einsum("bhqk,bhkd->bhqd", p, v)
        return (lambda x, *d: x.permute(*d))(o, 0, 2, 1, 3).reshape(B, Sq, Hq * Dh) @ wo

    def _B_ref(x, k_cache, v_cache, wq, wo):
        B, Sq, D = x.shape
        Hq, Dh = 32, 128
        Hkv, Sk = k_cache.shape[1], k_cache.shape[2]
        W = min(4096, max(256, Sk // 4))
        rep = Hq // Hkv
        q = (lambda x, *d: x.permute(*d))((x @ wq).reshape(B, Sq, Hq, Dh), 0, 2, 1, 3)
        k = (lambda x, n, axis: torch.repeat_interleave(x, n, dim=axis))(k_cache[:, :, Sk - W:, :], rep, axis=1)
        v = (lambda x, n, axis: torch.repeat_interleave(x, n, dim=axis))(v_cache[:, :, Sk - W:, :], rep, axis=1)
        scores = torch.einsum("bhqd,bhkd->bhqk", q, k) * (Dh ** -0.5)
        p = _softmax(scores, axis=-1)
        o = torch.einsum("bhqk,bhkd->bhqd", p, v)
        return (lambda x, *d: x.permute(*d))(o, 0, 2, 1, 3).reshape(B, Sq, Hq * Dh) @ wo

    a = _A_ref(A_x, A_k_cache, A_v_cache, A_wq, A_wo)
    b = _B_ref(B_x, B_k_cache, B_v_cache, B_wq, B_wo)
    return torch.concatenate([a, b], axis=-1)
```

```python
import re
_REG = re.compile(r'^(v|s|a)(\d+)$|^(v|s|a)\[(\d+):(\d+)\]$')
TRANS = ("v_exp_f32","v_log_f32","v_rcp_f32","v_rsq_f32","v_sqrt_f32","v_sin_f32","v_cos_f32")
def regs(op):
    op = op.strip()
    if op.startswith("-"): op = op[1:]
    if op.startswith("abs(") : op = op[4:-1]
    if op.startswith("|"): op = op.strip("|")
    if op == "vcc": return [("s",106),("s",107)]
    if op == "exec": return [("s",126),("s",127)]
    m = _REG.match(op)
    if not m: return []
    if m.group(1): return [(m.group(1), int(m.group(2)))]
    return [(m.group(3), i) for i in range(int(m.group(4)), int(m.group(5))+1)]

class Asm:
    def __init__(self):
        self.lines = []
        self.slot = 0
        self.valu_w = {}
        self.trans_w = {}
        self.mfma_w = {}
        self.mfma_c = {}
        self.st_data = {}
        self.vm = []
        self.maxv = 0; self.maxs = 0
    def raw(self, text):
        self.lines.append(text)
    def comment(self, t):
        self.lines.append("  ; " + t)
    def nop(self, n):
        while n > 0:
            k = min(n, 16)
            self.lines.append(f"  s_nop {k-1}")
            self.slot += k
            n -= k
    def fence(self):
        need = 0
        for d, w in ((self.valu_w,5),(self.trans_w,1),(self.mfma_c,3),(self.st_data,2)):
            for r, sl in d.items(): need = max(need, w - (self.slot - sl - 1))
        for r,(sl,_,_) in self.mfma_w.items(): need = max(need, 8 - (self.slot - sl - 1))
        if need > 0: self.nop(need)
    def label(self, name):
        self.fence()
        self.lines.append(name + ":")
    def I(self, text, tag=None):
        text = text.strip()
        parts = text.split(None, 1)
        mn = parts[0]
        rest = parts[1] if len(parts) > 1 else ""
        ops = []; depth = 0; cur = ""
        for ch in rest:
            if ch == "[": depth += 1
            if ch == "]": depth -= 1
            if ch == "," and depth == 0:
                ops.append(cur.strip()); cur = ""
            else: cur += ch
        if cur.strip(): ops.append(cur.strip())
        mods = ""
        if ops:
            sp = ops[-1].split(None, 1)
            ops[-1] = sp[0]
            if len(sp) > 1: mods = sp[1]
        R = [regs(o) for o in ops]
        for rl in R:
            for (k,i) in rl:
                if k == "v": self.maxv = max(self.maxv, i)
                if k == "s" and i < 104: self.maxs = max(self.maxs, i)
        need = 0
        def dist(sl): return self.slot - sl - 1
        def req(d, r, w):
            nonlocal need
            if r in d:
                sl = d[r][0] if isinstance(d[r], tuple) else d[r]
                need = max(need, w - dist(sl))
        is_mfma = mn.startswith("v_mfma")
        is_valu = mn.startswith("v_") and not is_mfma
        is_vmem = mn.startswith("buffer_") or mn.startswith("global_")
        is_ds = mn.startswith("ds_")
        dst = []; src = []
        if is_mfma:
            dst = R[0]; A, B, C = R[1], R[2], R[3]
            for r in A + B + C: req(self.valu_w, r, 2)
            for r in A + B: req(self.mfma_w, r, 8)
            for r in C:
                if r in self.mfma_w:
                    sl, ds_, dl = self.mfma_w[r]
                    if not (ds_ == C[0][1] and dl == len(C)): need = max(need, 6 - dist(sl))
            for r in dst:
                if r in self.mfma_w and r not in C: req(self.mfma_w, r, 8)
        elif is_valu:
            base = mn.replace("_dpp","").replace("_e32","").replace("_e64","")
            if base in ("v_swap_b32","v_permlane16_swap_b32","v_permlane32_swap_b32"):
                dst = R[0] + R[1]; src = R[0] + R[1]
            else:
                dst = R[0]; src = [r for rl in R[1:] for r in rl]
                if base in ("v_fmac_f32","v_writelane_b32"): src += R[0]
            for r in src + dst: req(self.mfma_w, r, 8)
            for r in dst:
                req(self.mfma_c, r, 3); req(self.st_data, r, 2)
            if base not in TRANS:
                for r in src: req(self.trans_w, r, 1)
            if "_dpp" in mn:
                for r in R[1]: req(self.valu_w, r, 2)
            if base.startswith("v_permlane"):
                for r in src: req(self.valu_w, r, 2)
            if base in ("v_readfirstlane_b32","v_readlane_b32"):
                for r in R[1]: req(self.valu_w, r, 1)
                if base == "v_readlane_b32":
                    for r in R[2]: req(self.valu_w, r, 4)
            for r in src:
                if r[0] == "s": req(self.valu_w, r, 2)
        elif is_vmem or is_ds:
            if "load" in mn or mn.startswith("ds_read") or mn.startswith("ds_bpermute"):
                dst = R[0]; src = [r for rl in R[1:] for r in rl]
            else:
                src = [r for rl in R for r in rl]
            for r in src + dst: req(self.mfma_w, r, 8)
            for r in src:
                if r[0] == "s": req(self.valu_w, r, 5)
                req(self.trans_w, r, 1)
            for r in dst:
                req(self.st_data, r, 2); req(self.mfma_c, r, 3)
        if need > 0: self.nop(need)
        self.lines.append("  " + text)
        sl = self.slot
        m = re.match(r"s_nop\s+(\d+)", text)
        self.slot += (int(m.group(1)) + 1) if m else 1
        if is_mfma:
            for r in dst: self.mfma_w[r] = (sl, dst[0][1], len(dst))
            for r in R[3]: self.mfma_c[r] = sl
        elif is_valu:
            for r in dst:
                self.valu_w[r] = sl
                self.mfma_w.pop(r, None)
                if mn.replace("_e32","") in TRANS: self.trans_w[r] = sl
                else: self.trans_w.pop(r, None)
        elif is_vmem:
            if "store" in mn and ("x4" in mn or "x3" in mn):
                for r in R[0]: self.st_data[r] = sl
            self.vm.append(tag)
            for r in dst:
                self.mfma_w.pop(r, None); self.valu_w.pop(r, None); self.trans_w.pop(r, None)
        elif is_ds:
            for r in dst:
                self.mfma_w.pop(r, None); self.valu_w.pop(r, None); self.trans_w.pop(r, None)
        elif mn.startswith("s_") and R and mn not in ("s_cmp_eq_u32",):
            if not mn.startswith("s_cmp") and not mn.startswith("s_cbranch") and not mn.startswith("s_waitcnt"):
                for r in R[0]: self.valu_w.pop(r, None)
    def wait_vm(self, tag, lgkm=False):
        idx = max(i for i, t in enumerate(self.vm) if t == tag)
        n = len(self.vm) - 1 - idx
        assert n <= 63, n
        self.I(f"s_waitcnt vmcnt({n})" + (" lgkmcnt(0)" if lgkm else ""))
        return n
    def text(self):
        return "\n".join(self.lines) + "\n"
```

```python
import sys
sys.path.insert(0, "dev")
from asmlib import Asm
NAME = "concat_heads__gqa_block_cached__sliding_block_cached__decode"
HEADER = open("cdna_kernels/" + NAME + ".s.ref").read().split("; Override launch geometry")[0]

WS_QP = 0x10000; WS_OP = 0x100000; WS_LSE = 0x300000; WS_FP = 0x320000; WS_TS = 0x400000
L_RED = 0; RED_STR = 2064
L_Q = 33024; Q_HS = 272; Q_BS = 2176
L_MX = 37376; L_LS = 38400
L_OB = 39424; L_OA = 72448; O_STR = 4128
LDS_BYTES = 105472
SCALE = (128 ** -0.5) * 1.4426950408889634
import struct
def f32(x): return "0x%08x" % struct.unpack("<I", struct.pack("<f", x))[0]

sKA, sVA, sKB, sVB, sWQ, sWO, sX, sWS, sOUT = [f"s[{44+4*i}:{47+4*i}]" for i in range(9)]
sW = "s3"
sTAG = "s99"; sEP1 = "s100"; sC = "s101"
vLane, vG, vN = "v1", "v2", "v3"
vKA, vKB, vVA, vVB, vWQ, vWO, vX = "v4", "v5", "v6", "v7", "v8", "v9", "v10"
vSE, vSO, vSE0, vSO0, vSE1, vSO1 = "v11", "v12", "v13", "v14", "v15", "v244"
vT = "v245"; vTS = "v255"
KR, VR, WR, SR, GR = 16, 96, 176, 208, 228
def vr(b, n=4): return f"v[{b}:{b+n-1}]"

def gen(ts=False, opt=None):
    opt = opt or {}
    A = Asm(); I = A.I
    nts = [0]
    def stamp(name=""):
        if not ts: return
        k = nts[0]; nts[0] += 1
        assert k < 32
        I("s_memrealtime s[4:5]")
        I("s_waitcnt lgkmcnt(0)")
        I(f"v_writelane_b32 {vTS}, s4, {k}")
    def transpose(b):
        for (x, y) in ((1,4),(2,8),(3,12),(6,9),(7,13),(11,14)):
            I(f"v_swap_b32 v{b+x}, v{b+y}")
    def tag4(b):
        for i in range(4): I(f"v_perm_b32 v{b+i}, v{b+i}, {vT}, s{8+i}")
    def chk4(b, tmp, first):
        I(f"v_perm_b32 {tmp}, v{b+1}, v{b}, s12")
        I(f"v_perm_b32 {tmp}, v{b+2}, {tmp}, s13")
        I(f"v_perm_b32 {tmp}, v{b+3}, {tmp}, s14")
        if first: I(f"v_cmp_ne_u32 s[6:7], {tmp}, {vT}")
        else:
            I(f"v_cmp_ne_u32 vcc, {tmp}, {vT}")
            I("s_or_b64 s[6:7], s[6:7], vcc")
    def write_acc(vaddr, d):
        I(f"ds_write2_b64 {vaddr}, {vr(d,2)}, {vr(d+4,2)} offset0:0 offset1:1")
        I(f"ds_write2_b64 {vaddr}, {vr(d+8,2)}, {vr(d+12,2)} offset0:2 offset1:3")
        I(f"ds_write2_b64 {vaddr}, {vr(d+2,2)}, {vr(d+6,2)} offset0:64 offset1:65")
        I(f"ds_write2_b64 {vaddr}, {vr(d+10,2)}, {vr(d+14,2)} offset0:66 offset1:67")
    def barrier():
        I("s_waitcnt lgkmcnt(0)")
        I("s_barrier")

    A.raw(HEADER.rstrip())
    A.raw(f"; @launch grid=(256,1,1) block=(512,1,1) lds={LDS_BYTES}")
    A.raw('.amdgcn_target "amdgcn-amd-amdhsa--gfx950"\n.text')
    A.raw(f".globl {NAME}_kernel\n.p2align 8\n.type {NAME}_kernel,@function\n{NAME}_kernel:")
    I("s_cmp_ge_u32 s2, 256")
    I("s_cbranch_scc1 L_end")
    I("s_load_dwordx16 s[16:31], s[0:1], 0")
    I("s_load_dwordx8 s[32:39], s[0:1], 64")
    I("s_load_dwordx2 s[40:41], s[0:1], 96")
    if ts: I(f"v_mov_b32 {vTS}, 0")
    stamp("start")
    I(f"v_lshrrev_b32 v246, 6, v0")
    I(f"v_and_b32 {vLane}, 63, v0")
    I(f"v_readfirstlane_b32 {sW}, v246")
    I(f"v_lshrrev_b32 {vG}, 4, {vLane}")
    I(f"v_and_b32 {vN}, 15, {vLane}")
    I("s_lshr_b32 s4, s2, 4")
    I("s_and_b32 s5, s2, 15")
    I("s_lshl_b32 s6, s4, 21")
    I("s_lshl_b32 s7, s5, 17")
    I("s_add_u32 s7, s7, s6")
    I(f"s_lshl_b32 s8, {sW}, 14")
    I("s_add_u32 s7, s7, s8")
    I("s_lshl_b32 s9, s5, 15")
    I("s_add_u32 s9, s9, s6")
    I(f"s_lshl_b32 s8, {sW}, 12")
    I("s_add_u32 s9, s9, s8")
    I(f"s_add_u32 s9, s9, {6144*256}")
    I(f"v_lshlrev_b32 v246, 8, {vN}")
    I(f"v_lshl_add_u32 v246, {vG}, 4, v246")
    I(f"v_add_u32 {vKA}, s7, v246")
    I(f"v_add_u32 {vKB}, s9, v246")
    I(f"v_lshlrev_b32 v247, 4, {vN}")
    I(f"v_lshl_add_u32 v246, {vG}, 10, v247")
    I(f"v_add_u32 {vVA}, s7, v246")
    I(f"v_add_u32 {vVB}, s9, v246")
    I("s_and_b32 s10, s2, 3")
    I("s_lshl_b32 s10, s10, 8")
    I(f"s_lshl_b32 s11, {sW}, 5")
    I("s_add_u32 s10, s10, s11")
    I("s_lshl_b32 s12, s10, 13")
    I("s_lshr_b32 s13, s2, 2")
    I("s_and_b32 s13, s13, 31")
    I("s_lshl_b32 s13, s13, 8")
    I("s_add_u32 s12, s12, s13")
    I(f"v_lshl_add_u32 v246, {vG}, 15, v247")
    I(f"v_add_u32 {vWQ}, s12, v246")
    I(f"v_bfe_u32 v248, {vLane}, 1, 2")
    I(f"v_bfe_u32 v249, {vLane}, 3, 1")
    I(f"v_lshlrev_b32 v246, 11, v248")
    I(f"v_lshl_add_u32 v246, v249, 5, v246")
    I(f"v_lshl_add_u32 v246, {vG}, 3, v246")
    I("s_lshl_b32 s10, s10, 1")
    I(f"v_add_u32 {vX}, s10, v246")
    I("s_lshr_b32 s14, s2, 3")
    I("s_and_b32 s14, s14, 15")
    I("s_lshl_b32 s14, s14, 8")
    I("s_add_u32 s14, s14, s11")
    I("s_lshl_b32 s14, s14, 11")
    I("s_and_b32 s15, s2, 7")
    I("s_lshl_b32 s15, s15, 8")
    I("s_add_u32 s14, s14, s15")
    I(f"v_lshl_add_u32 v246, {vG}, 13, v247")
    I(f"v_add_u32 {vWO}, s14, v246")
    for u in range(2):
        for t in range(4):
            I(f"s_mov_b32 s{80+4*u+t}, {t*8192+u*131072}")
            I(f"s_mov_b32 s{88+4*u+t}, {t*2048+u*32768}")
    for j in range(1, 4): I(f"s_mov_b32 s{95+j}, {4096*j}")
    I("s_waitcnt lgkmcnt(0)")
    I("s_load_dword s42, s[40:41], 0")
    I("s_cmp_ge_u32 s2, 128")
    I("s_cselect_b32 s60, s32, s22"); I("s_cselect_b32 s61, s33, s23")
    I("s_cselect_b32 s68, s26, s16"); I("s_cselect_b32 s69, s27, s17")
    I("s_cselect_b32 s64, s34, s24"); I("s_cselect_b32 s65, s35, s25")
    I("s_mov_b32 s62, 8388608"); I("s_mov_b32 s63, 0x00020000")
    I("s_mov_b32 s70, 8192"); I("s_mov_b32 s71, 0x00020000")
    I(f"buffer_load_dwordx2 v[232:233], {vX}, {sX}, 0 offen", "x")
    for u in range(2):
        for t in range(4):
            I(f"buffer_load_dwordx4 {vr(WR+16*u+4*t)}, {vWQ}, {sWQ}, s{80+4*u+t} offen nt", f"wq{u}")
    I("s_mov_b32 s66, 8388608"); I("s_mov_b32 s67, 0x00020000")
    for (d, s) in ((44,18),(48,20),(52,28),(56,30)):
        I(f"s_mov_b32 s{d}, s{s}"); I(f"s_mov_b32 s{d+1}, s{s+1}")
        I(f"s_mov_b32 s{d+2}, 33554432"); I(f"s_mov_b32 s{d+3}, 0x00020000")
    I("s_mov_b32 s72, s40"); I("s_mov_b32 s73, s41"); I("s_mov_b32 s74, 268435456"); I("s_mov_b32 s75, 0x00020000")
    I("s_mov_b32 s76, s36"); I("s_mov_b32 s77, s37"); I("s_mov_b32 s78, 16384"); I("s_mov_b32 s79, 0x00020000")
    if opt.get("b1", True): I("s_barrier")
    def loadK(j):
        for st in range(4):
            if j == 0: I(f"buffer_load_dwordx4 {vr(KR+4*st)}, {vKB}, {sKB}, 0 offen offset:{64*st} nt", "K0")
            else:
                so = "0" if j == 1 else f"s{94+j}"
                I(f"buffer_load_dwordx4 {vr(KR+16*j+4*st)}, {vKA}, {sKA}, {so} offen offset:{64*st} nt", f"K{j}")
    def loadV(j):
        for t in range(4):
            if j == 0: I(f"buffer_load_dwordx4 {vr(VR+4*t)}, {vVB}, {sVB}, 0 offen offset:{256*t} nt", "V0")
            else:
                so = "0" if j == 1 else f"s{94+j}"
                I(f"buffer_load_dwordx4 {vr(VR+16*j+4*t)}, {vVA}, {sVA}, {so} offen offset:{256*t} nt", f"V{j}")
    WO = 48
    def loadWO(u):
        for t in range(4):
            I(f"buffer_load_dwordx4 {vr(WO+16*u+4*t)}, {vWO}, {sWO}, s{88+4*u+t} offen nt", f"wo{u}")
    npre = opt.get("npre", 1)
    for j in range(npre): loadK(j)
    I(f"v_and_b32 v246, 1, {vLane}")
    I("v_cmp_eq_u32 vcc, 0, v246")
    I("v_mov_b32 v246, 0x01000c0c"); I("v_mov_b32 v247, 0x0c0c0100")
    I(f"v_cndmask_b32 {vSE}, v246, v247, vcc")
    I("v_mov_b32 v246, 0x03020c0c"); I("v_mov_b32 v247, 0x0c0c0302")
    I(f"v_cndmask_b32 {vSO}, v246, v247, vcc")
    I("v_cmp_eq_u32 vcc, 0, v249")
    I("v_mov_b32 v246, 0x0c0c0c0c")
    I(f"v_cndmask_b32 {vSE0}, v246, {vSE}, vcc")
    I(f"v_cndmask_b32 {vSO0}, v246, {vSO}, vcc")
    I(f"v_cndmask_b32 {vSE1}, {vSE}, v246, vcc")
    I(f"v_cndmask_b32 {vSO1}, {vSO}, v246, vcc")
    for i in range(4): I(f"s_mov_b32 s{8+i}, {0x07060500+i:#x}")
    I("s_mov_b32 s12, 0x0c0c0400"); I("s_mov_b32 s13, 0x0c040100"); I("s_mov_b32 s14, 0x04020100")
    I(f"s_mov_b32 {sC}, {f32(SCALE)}")
    I("s_waitcnt lgkmcnt(0)")
    I(f"s_add_u32 {sEP1}, s42, 1")
    I(f"s_mul_i32 {sTAG}, {sEP1}, 0x9e3779b1")
    I(f"s_lshr_b32 s4, {sTAG}, 15"); I(f"s_xor_b32 {sTAG}, {sTAG}, s4")
    I(f"s_mul_i32 {sTAG}, {sTAG}, 0x85ebca6b")
    I(f"s_lshr_b32 s4, {sTAG}, 13"); I(f"s_xor_b32 {sTAG}, {sTAG}, s4")
    I(f"v_mov_b32 {vT}, {sTAG}")
    I(f"v_lshrrev_b32 v246, 1, {vG}")
    I(f"v_lshl_add_u32 v246, {sW}, 1, v246")
    I(f"v_mul_u32_u24 v246, {RED_STR}, v246")
    I(f"v_and_b32 v247, 1, {vG}")
    I(f"v_lshl_add_u32 v246, v247, 10, v246")
    I(f"v_lshl_add_u32 v250, {vN}, 5, v246")
    I(f"v_and_b32 v246, 3, v0")
    I(f"v_mul_u32_u24 v246, {4*RED_STR}, v246")
    I(f"v_lshrrev_b32 v247, 2, v0")
    I(f"v_lshl_add_u32 v251, v247, 4, v246")

    def proj(Wb, xb, af, D, waits):
        for u, (se, so) in enumerate(((vSE0, vSO0), (vSE1, vSO1))):
            I(f"v_perm_b32 v{af+4*u+0}, v{xb}, v{xb}, {se}")
            I(f"v_perm_b32 v{af+4*u+1}, v{xb}, v{xb}, {so}")
            I(f"v_perm_b32 v{af+4*u+2}, v{xb+1}, v{xb+1}, {se}")
            I(f"v_perm_b32 v{af+4*u+3}, v{xb+1}, v{xb+1}, {so}")
        for u in range(2):
            if waits[u] is not None:
                A.wait_vm(waits[u]); transpose(Wb+16*u)
            for r in range(4):
                c = "0" if u == 0 else vr(D+4*r)
                I(f"v_mfma_f32_16x16x32_bf16 {vr(D+4*r)}, {vr(af+4*u)}, {vr(Wb+16*u+4*r)}, {c}")
    def red_read_sum(D):
        for j in range(4): I(f"ds_read_b128 {vr(D+4*j)}, v251 offset:{L_RED+j*RED_STR}")
        I("s_waitcnt lgkmcnt(0)")
        I(f"v_pk_add_f32 {vr(D,2)}, {vr(D,2)}, {vr(D+4,2)}")
        I(f"v_pk_add_f32 {vr(D+2,2)}, {vr(D+2,2)}, {vr(D+6,2)}")
        I(f"v_pk_add_f32 {vr(D+8,2)}, {vr(D+8,2)}, {vr(D+12,2)}")
        I(f"v_pk_add_f32 {vr(D+10,2)}, {vr(D+10,2)}, {vr(D+14,2)}")
        I(f"v_pk_add_f32 {vr(D,2)}, {vr(D,2)}, {vr(D+8,2)}")
        I(f"v_pk_add_f32 {vr(D+2,2)}, {vr(D+2,2)}, {vr(D+10,2)}")
        for qp in ("[1,0,3,2]", "[2,3,0,1]"):
            for j in range(4): I(f"v_add_f32_dpp v{D+j}, v{D+j}, v{D+j} quad_perm:{qp} row_mask:0xf bank_mask:0xf")

    A.wait_vm("x")
    proj(WR, 232, 224, SR, ("wq0", "wq1"))
    stamp("wq arrived")
    write_acc("v250", SR)
    I("s_lshr_b32 s4, s2, 2"); I("s_and_b32 s4, s4, 31"); I("s_lshl_b32 s4, s4, 14")
    I("s_lshr_b32 s5, s2, 7"); I("s_lshl_b32 s5, s5, 2"); I("s_and_b32 s6, s2, 3"); I("s_add_u32 s5, s5, s6")
    I("s_lshl_b32 s5, s5, 9"); I("s_add_u32 s4, s4, s5"); I(f"s_add_u32 s4, s4, {WS_QP}")
    I("v_lshrrev_b32 v246, 7, v0")
    I("v_lshlrev_b32 v246, 12, v246")
    I("v_bfe_u32 v247, v0, 2, 5")
    I("v_lshl_add_u32 v246, v247, 4, v246")
    I("v_add_u32 v252, s4, v246")
    barrier()
    red_read_sum(SR)
    tag4(SR)
    I("s_mov_b32 exec_lo, 0x11111111"); I("s_mov_b32 exec_hi, 0x11111111")
    I(f"buffer_store_dwordx4 {vr(SR)}, v252, {sWS}, 0 offen sc1", "qst")
    I("s_mov_b64 exec, -1")
    I("s_barrier")
    stamp("q published")
    for j in range(npre, 5): loadK(j)
    I("s_lshr_b32 s4, s2, 4"); I("s_and_b32 s5, s4, 3"); I("s_lshl_b32 s5, s5, 3"); I(f"s_add_u32 s5, s5, {sW}")
    I("s_lshl_b32 s5, s5, 2"); I("s_lshr_b32 s4, s4, 2"); I("s_add_u32 s5, s5, s4"); I("s_lshl_b32 s5, s5, 12")
    I(f"s_add_u32 s5, s5, {WS_QP}")
    I(f"v_lshlrev_b32 v246, 4, {vLane}")
    I("v_add_u32 v252, s5, v246")
    def gatherQ(tag):
        for i in range(4): I(f"buffer_load_dwordx4 {vr(GR+4*i)}, v252, {sWS}, 0 offen offset:{1024*i} sc1", tag)
    gatherQ("G")
    I("s_barrier")
    loadV(0); loadV(1); loadV(2)
    I("s_mov_b32 s15, 0")
    A.wait_vm("G")
    stamp("G arrived")
    A.label("L_qchk")
    for i in range(4): chk4(GR+4*i, "v246", i == 0)
    I("s_cmp_eq_u64 s[6:7], 0")
    I("s_cbranch_scc1 L_qok")
    I("s_add_u32 s15, s15, 1")
    I("s_cmp_gt_u32 s15, 20000")
    I("s_cbranch_scc1 L_qok")
    nvm = len(A.vm)
    gatherQ("G2")
    I("s_waitcnt vmcnt(0)")
    I("s_branch L_qchk")
    del A.vm[nvm:]
    A.label("L_qok")
    stamp("G ok")
    for j in range(0, 4, 2):
        I(f"v_pk_add_f32 {vr(GR+j,2)}, {vr(GR+j,2)}, {vr(GR+4+j,2)}")
        I(f"v_pk_add_f32 {vr(GR+8+j,2)}, {vr(GR+8+j,2)}, {vr(GR+12+j,2)}")
    for j in range(4): I(f"v_permlane32_swap_b32 v{GR+j}, v{GR+8+j}")
    for j in range(0, 4, 2): I(f"v_pk_add_f32 {vr(GR+j,2)}, {vr(GR+j,2)}, {vr(GR+8+j,2)}")
    I(f"v_cvt_pk_bf16_f32 v{GR}, v{GR}, v{GR+1}")
    I(f"v_cvt_pk_bf16_f32 v{GR+1}, v{GR+2}, v{GR+3}")
    I(f"v_lshrrev_b32 v246, 5, {vLane}")
    I(f"v_mul_u32_u24 v246, {Q_BS}, v246")
    I(f"v_and_b32 v247, 31, {vLane}")
    I(f"v_lshl_add_u32 v246, v247, 3, v246")
    I(f"s_mul_i32 s4, {sW}, {Q_HS}")
    I("v_add_u32 v246, s4, v246")
    I(f"ds_write_b64 v246, {vr(GR,2)} offset:{L_Q}")
    I(f"v_lshrrev_b32 v247, 1, {vN}")
    I(f"v_mul_u32_u24 v247, {Q_HS}, v247")
    I(f"v_lshl_add_u32 v247, {vG}, 4, v247")
    barrier()
    QA, QB = WR, WR+16
    for st in range(4): I(f"ds_read_b128 {vr(QB+4*st)}, v247 offset:{L_Q+Q_BS+64*st}")
    for st in range(4): I(f"ds_read_b128 {vr(QA+4*st)}, v247 offset:{L_Q+64*st}")
    I("s_waitcnt lgkmcnt(0)")
    for st in range(4):
        for j in range(5):
            q = QB if j == 0 else QA
            c = "0" if st == 0 else vr(SR+4*j)
            I(f"v_mfma_f32_16x16x32_bf16 {vr(SR+4*j)}, {vr(KR+16*j+4*st)}, {vr(q+4*st)}, {c}")
    loadV(3); loadV(4)
    stamp("QK done")
    TM = 80
    mA, mB = f"v{TM}", f"v{TM+1}"
    I(f"v_max3_f32 {mB}, v{SR}, v{SR+1}, v{SR+2}")
    I(f"v_max_f32 {mB}, {mB}, v{SR+3}")
    I(f"v_max3_f32 {mA}, v{SR+4}, v{SR+5}, v{SR+6}")
    for k in range(SR+7, SR+19, 2): I(f"v_max3_f32 {mA}, {mA}, v{k}, v{k+1}")
    I(f"v_max_f32 {mA}, {mA}, v{SR+19}")
    def xreduce(a, b, op, t):
        I(f"v_permlane32_swap_b32 {a}, {b}")
        I(f"{op} {a}, {a}, {b}")
        I(f"v_mov_b32 {t}, {a}")
        I(f"v_permlane16_swap_b32 {a}, {t}")
        I(f"{op} {a}, {a}, {t}")
    xreduce(mA, mB, "v_max_f32", f"v{TM+2}")
    I(f"v_lshrrev_b32 v246, 5, {vLane}")
    I(f"v_lshl_add_u32 v246, v246, 4, {vN}")
    I(f"v_lshlrev_b32 v246, 5, v246")
    I(f"v_lshl_add_u32 v253, {sW}, 2, v246")
    I(f"v_lshlrev_b32 v254, 5, {vN}")
    I(f"ds_write_b32 v253, {mA} offset:{L_MX}")
    barrier()
    R = WR
    for k in range(4): I(f"ds_read_b128 {vr(R+4*k)}, v254 offset:{L_MX+(k>>1)*512+(k&1)*16}")
    I("s_waitcnt lgkmcnt(0)")
    for (m, b) in ((mA, R), (mB, R+8)):
        I(f"v_max3_f32 {m}, v{b}, v{b+1}, v{b+2}")
        I(f"v_max3_f32 {m}, {m}, v{b+3}, v{b+4}")
        I(f"v_max3_f32 {m}, {m}, v{b+5}, v{b+6}")
        I(f"v_max_f32 {m}, {m}, v{b+7}")
    I(f"v_mul_f32 {mA}, {sC}, {mA}")
    I(f"v_mul_f32 {mB}, {sC}, {mB}")
    for k in range(20):
        m = mB if k < 4 else mA
        I(f"v_fma_f32 v{SR+k}, v{SR+k}, {sC}, -{m}")
    for k in range(20): I(f"v_exp_f32 v{SR+k}, v{SR+k}")
    lA, lB = f"v{TM+4}", f"v{TM+5}"
    I(f"v_add_f32 {lB}, v{SR}, v{SR+1}"); I(f"v_add_f32 {lB}, {lB}, v{SR+2}"); I(f"v_add_f32 {lB}, {lB}, v{SR+3}")
    I(f"v_add_f32 {lA}, v{SR+4}, v{SR+5}")
    for k in range(6, 20): I(f"v_add_f32 {lA}, {lA}, v{SR+k}")
    xreduce(lA, lB, "v_add_f32", f"v{TM+2}")
    I(f"ds_write_b32 v253, {lA} offset:{L_LS}")
    I(f"s_lshl_b32 s4, {sW}, 1")
    I(f"v_readlane_b32 s42, {mA}, s4")
    I(f"v_readlane_b32 s43, {mB}, s4")
    for j in range(5):
        b = SR+4*j
        I(f"v_cvt_pk_bf16_f32 v{TM+6}, v{b}, v{b+1}")
        I(f"v_cvt_pk_bf16_f32 v{TM+7}, v{b+2}, v{b+3}")
        I(f"v_perm_b32 v{b}, v{TM+6}, v{TM+6}, {vSE}")
        I(f"v_perm_b32 v{b+1}, v{TM+6}, v{TM+6}, {vSO}")
        I(f"v_perm_b32 v{b+2}, v{TM+7}, v{TM+7}, {vSE}")
        I(f"v_perm_b32 v{b+3}, v{TM+7}, v{TM+7}, {vSO}")
    stamp("softmax done")
    wosplit = opt.get("wosplit", 1)
    for u in range(wosplit): loadWO(u)
    OA, OB = 16, 32
    def pv(j, O, first):
        A.wait_vm(f"V{j}")
        transpose(VR+16*j)
        for r in range(4):
            c = "0" if first else vr(O+4*r)
            I(f"v_mfma_f32_16x16x32_bf16 {vr(O+4*r)}, {vr(SR+4*j)}, {vr(VR+16*j+4*r)}, {c}")
    I(f"s_mul_i32 s4, {sW}, {O_STR}")
    I(f"v_lshlrev_b32 v246, 10, {vG}")
    I(f"v_lshl_add_u32 v246, {vN}, 5, v246")
    I(f"v_add_u32 v{TM+8}, s4, v246")
    I("v_and_b32 v246, 1, v0")
    I(f"v_mul_u32_u24 v246, {4*O_STR}, v246")
    I("v_lshrrev_b32 v247, 1, v0")
    I(f"v_lshl_add_u32 v{TM+9}, v247, 4, v246")
    I("s_lshr_b32 s4, s2, 4"); I("s_lshl_b32 s4, s4, 3"); I(f"s_add_u32 s4, s4, {sW}")
    I("s_lshl_b32 s5, s4, 13"); I("s_and_b32 s6, s2, 15"); I("s_lshl_b32 s7, s6, 7"); I("s_add_u32 s5, s5, s7")
    I(f"s_add_u32 s5, s5, {WS_OP}")
    I("v_bfe_u32 v246, v0, 4, 2")
    I("v_lshlrev_b32 v246, 11, v246")
    I("v_bfe_u32 v247, v0, 1, 3")
    I("v_lshl_add_u32 v246, v247, 4, v246")
    I(f"v_add_u32 v{TM+10}, s5, v246")
    I("s_lshl_b32 s5, s4, 7"); I("s_lshl_b32 s7, s6, 3"); I("s_add_u32 s5, s5, s7"); I(f"s_add_u32 s5, s5, {WS_LSE}")
    I(f"v_mov_b32 v{TM+11}, s5")
    I(f"s_lshl_b32 s4, {sW}, 6")
    I(f"v_mov_b32 v{TM+12}, s4")
    I(f"s_mov_b32 s4, {16*8*4*2048}")
    I(f"s_mov_b32 s5, {16*8*128}")
    def publishO(br, O, Lb):
        write_acc_off(f"v{TM+8}", O, Lb)
        I(f"v_add_u32 v247, {Lb}, v{TM+9}")
        barrier()
        for j in range(4): I(f"ds_read_b128 {vr(R+4*j)}, v247 offset:{j*O_STR}")
        for k in range(2): I(f"ds_read_b128 {vr(R+16+4*k)}, v{TM+12} offset:{L_LS+br*512+16*k}")
        I("s_waitcnt lgkmcnt(0)")
        I(f"v_pk_add_f32 {vr(R+16,2)}, {vr(R+16,2)}, {vr(R+18,2)}")
        I(f"v_pk_add_f32 {vr(R+20,2)}, {vr(R+20,2)}, {vr(R+22,2)}")
        I(f"v_pk_add_f32 {vr(R,2)}, {vr(R,2)}, {vr(R+4,2)}")
        I(f"v_pk_add_f32 {vr(R+16,2)}, {vr(R+16,2)}, {vr(R+20,2)}")
        I(f"v_pk_add_f32 {vr(R+2,2)}, {vr(R+2,2)}, {vr(R+6,2)}")
        I(f"v_add_f32 v{R+16}, v{R+16}, v{R+17}")
        I(f"v_pk_add_f32 {vr(R+8,2)}, {vr(R+8,2)}, {vr(R+12,2)}")
        I(f"v_rcp_f32 v{R+18}, v{R+16}")
        I(f"v_log_f32 v{R+20}, v{R+16}")
        I(f"v_pk_add_f32 {vr(R+10,2)}, {vr(R+10,2)}, {vr(R+14,2)}")
        I(f"v_pk_add_f32 {vr(R,2)}, {vr(R,2)}, {vr(R+8,2)}")
        I(f"v_pk_add_f32 {vr(R+2,2)}, {vr(R+2,2)}, {vr(R+10,2)}")
        I(f"v_add_f32 v{R+20}, s{42+br}, v{R+20}")
        I(f"v_mov_b32 v{R+21}, {vT}")
        for j in range(4): I(f"v_add_f32_dpp v{R+j}, v{R+j}, v{R+j} quad_perm:[1,0,3,2] row_mask:0xf bank_mask:0xf")
        for j in range(4): I(f"v_mul_f32 v{R+j}, v{R+j}, v{R+18}")
        tag4(R)
        I("s_mov_b32 exec_lo, 0x55555555"); I("s_mov_b32 exec_hi, 0x55555555")
        so = "0" if br == 0 else "s4"
        I(f"buffer_store_dwordx4 {vr(R)}, v{TM+10}, {sWS}, {so} offen sc1", f"ost{br}")
        I("s_mov_b64 exec, 1")
        so = "0" if br == 0 else "s5"
        I(f"buffer_store_dwordx2 {vr(R+20,2)}, v{TM+11}, {sWS}, {so} offen sc1", f"ost{br}")
        I("s_mov_b64 exec, -1")
    def write_acc_off(vaddr, d, base):
        I(f"v_add_u32 v246, {base}, {vaddr}")
        write_acc("v246", d)
    pv(0, OB, True)
    publishO(1, OB, L_OB)
    stamp("B published")
    for j in range(1, 5): pv(j, OA, j == 1)
    stamp("PV done")
    publishO(0, OA, L_OA)
    I("s_barrier")
    stamp("A published")
    for u in range(wosplit, 2): loadWO(u)
    I("s_lshr_b32 s4, s2, 3"); I("s_and_b32 s4, s4, 15")
    I("s_lshr_b32 s5, s4, 2")
    I("s_lshr_b32 s6, s2, 7"); I("s_lshl_b32 s6, s6, 4"); I("s_add_u32 s5, s5, s6")
    I("s_lshl_b32 s4, s4, 1"); I(f"s_lshr_b32 s6, {sW}, 2"); I("s_add_u32 s4, s4, s6"); I("s_and_b32 s4, s4, 7")
    I("s_lshl_b32 s5, s5, 3"); I("s_add_u32 s5, s5, s4")
    I("s_lshl_b32 s6, s5, 7"); I(f"s_add_u32 s6, s6, {WS_LSE}")
    I("s_lshl_b32 s5, s5, 2"); I(f"s_and_b32 s7, {sW}, 3"); I("s_add_u32 s5, s5, s7"); I("s_lshl_b32 s5, s5, 11")
    I(f"s_add_u32 s5, s5, {WS_OP}")
    I(f"v_lshlrev_b32 v247, 18, {vG}")
    I(f"v_lshl_add_u32 v247, {vN}, 4, v247")
    I("v_add_u32 v252, s5, v247")
    I(f"v_lshlrev_b32 v247, 12, {vG}")
    I(f"v_lshl_add_u32 v247, {vN}, 3, v247")
    I("v_add_u32 v253, s6, v247")
    DG, LG, TT = 96, 128, 144
    def gatherL(tag):
        I(f"buffer_load_dwordx2 {vr(LG,2)}, v253, {sWS}, 0 offen sc1", tag)
    def gatherO(tag):
        for i in range(8): I(f"buffer_load_dwordx4 {vr(DG+4*i)}, v252, {sWS}, 0 offen offset:{256*i} sc1", tag)
    gatherL("GO"); gatherO("GO")
    I(f"v_lshlrev_b32 v254, 6, v248")
    I(f"v_lshl_add_u32 v254, v249, 4, v254")
    I(f"v_lshl_add_u32 v254, {vG}, 2, v254")
    I("s_lshr_b32 s4, s2, 7"); I("s_lshl_b32 s4, s4, 3"); I("s_and_b32 s5, s2, 7"); I("s_add_u32 s4, s4, s5")
    I("s_lshl_b32 s4, s4, 15")
    I("s_lshr_b32 s5, s2, 3"); I("s_and_b32 s5, s5, 15")
    I("s_lshl_b32 s6, s5, 7"); I("s_add_u32 s6, s6, s4"); I(f"s_add_u32 s6, s6, {WS_FP}")
    I("v_lshrrev_b32 v246, 5, v0"); I("v_lshlrev_b32 v246, 11, v246")
    I("v_bfe_u32 v247, v0, 2, 3"); I("v_lshl_add_u32 v246, v247, 4, v246")
    I(f"v_add_u32 v{TM+10}, s6, v246")
    I("s_lshl_b32 s6, s5, 11"); I("s_add_u32 s6, s6, s4"); I(f"s_add_u32 s6, s6, {WS_FP}")
    I(f"v_lshlrev_b32 v246, 4, {vLane}")
    I(f"v_add_u32 v{TM+11}, s6, v246")
    A.wait_vm("wo0"); transpose(WO)
    A.wait_vm("wo1"); transpose(WO+16)
    stamp("wo arrived")
    I("s_mov_b32 s15, 0")
    A.wait_vm("GO")
    stamp("GO arrived")
    A.label("L_ochk")
    for i in range(8): chk4(DG+4*i, "v246", i == 0)
    I(f"v_cmp_ne_u32 vcc, v{LG+1}, {vT}")
    I("s_or_b64 s[6:7], s[6:7], vcc")
    I("s_cmp_eq_u64 s[6:7], 0")
    I("s_cbranch_scc1 L_ook")
    nvm = len(A.vm)
    A.label("L_opoll")
    I("s_add_u32 s15, s15, 1")
    I("s_cmp_gt_u32 s15, 20000")
    I("s_cbranch_scc1 L_ook")
    gatherL("GO2")
    I("s_waitcnt vmcnt(0)")
    I(f"v_cmp_ne_u32 vcc, v{LG+1}, {vT}")
    I("s_cbranch_vccnz L_opoll")
    gatherO("GO2")
    I("s_waitcnt vmcnt(0)")
    I("s_branch L_ochk")
    del A.vm[nvm:]
    A.label("L_ook")
    stamp("GO ok")
    M = f"v{TT}"; Ls = f"v{TT+1}"
    I(f"v_mov_b32 {M}, v{LG}")
    for k in (8, 4, 2, 1): I(f"v_max_f32_dpp {M}, {M}, {M} row_ror:{k} row_mask:0xf bank_mask:0xf")
    I(f"v_sub_f32 v{LG}, v{LG}, {M}")
    I(f"v_exp_f32 v{LG}, v{LG}")
    I(f"v_mov_b32 {Ls}, v{LG}")
    for k in (8, 4, 2, 1): I(f"v_add_f32_dpp {Ls}, {Ls}, {Ls} row_ror:{k} row_mask:0xf bank_mask:0xf")
    I(f"v_rcp_f32 {Ls}, {Ls}")
    I(f"v_mul_f32 v{LG}, v{LG}, {Ls}")
    Wt = LG+2
    for i in range(8):
        I(f"v_mov_b32_dpp v{Wt+i}, v{LG} row_newbcast:{2*i} row_mask:0xf bank_mask:0x3")
        I(f"v_mov_b32_dpp v{Wt+i}, v{LG} row_newbcast:{2*i+1} row_mask:0xf bank_mask:0xc")
    AC = TT+4
    for j in range(4): I(f"v_mul_f32 v{AC+j}, v{Wt}, v{DG+j}")
    for i in range(1, 8):
        for j in range(4): I(f"v_fmac_f32 v{AC+j}, v{Wt+i}, v{DG+4*i+j}")
    for j in range(4): I(f"v_add_f32_dpp v{AC+j}, v{AC+j}, v{AC+j} row_ror:8 row_mask:0xf bank_mask:0xf")
    I(f"v_cvt_pk_bf16_f32 v{TT+10}, v{AC}, v{AC+1}")
    I(f"v_cvt_pk_bf16_f32 v{TT+11}, v{AC+2}, v{AC+3}")
    I(f"ds_bpermute_b32 v{TT+8}, v254, v{TT+10}")
    I(f"ds_bpermute_b32 v{TT+9}, v254, v{TT+11}")
    I("s_waitcnt lgkmcnt(0)")
    proj(WO, TT+8, 224, SR, (None, None))
    write_acc("v250", SR)
    barrier()
    red_read_sum(SR)
    tag4(SR)
    I("s_mov_b32 exec_lo, 0x11111111"); I("s_mov_b32 exec_hi, 0x11111111")
    I(f"buffer_store_dwordx4 {vr(SR)}, v{TM+10}, {sWS}, 0 offen sc1", "fst")
    I("s_mov_b64 exec, -1")
    stamp("F published")
    I(f"s_cmp_lg_u32 {sW}, 0")
    I("s_cbranch_scc1 L_fin")
    I("s_mov_b32 s15, 0")
    A.label("L_fl")
    I(f"buffer_load_dwordx4 {vr(DG)}, v{TM+11}, {sWS}, 0 offen sc1")
    I(f"buffer_load_dwordx4 {vr(DG+4)}, v{TM+11}, {sWS}, 0 offen offset:1024 sc1")
    I("s_waitcnt vmcnt(0)")
    chk4(DG, "v246", True); chk4(DG+4, "v246", False)
    I("s_cmp_eq_u64 s[6:7], 0")
    I("s_cbranch_scc1 L_fok")
    I("s_add_u32 s15, s15, 1")
    I("s_cmp_gt_u32 s15, 20000")
    I("s_cbranch_scc0 L_fl")
    A.label("L_fok")
    stamp("F ok")
    I(f"v_pk_add_f32 {vr(DG,2)}, {vr(DG,2)}, {vr(DG+4,2)}")
    I(f"v_pk_add_f32 {vr(DG+2,2)}, {vr(DG+2,2)}, {vr(DG+6,2)}")
    I(f"v_permlane32_swap_b32 v{DG}, v{DG+1}")
    I(f"v_permlane32_swap_b32 v{DG+2}, v{DG+3}")
    I(f"v_add_f32 v{DG}, v{DG}, v{DG+1}")
    I(f"v_add_f32 v{DG+2}, v{DG+2}, v{DG+3}")
    I(f"v_permlane16_swap_b32 v{DG}, v{DG+2}")
    I(f"v_add_f32 v{DG}, v{DG}, v{DG+2}")
    I(f"v_add_f32_dpp v{DG}, v{DG}, v{DG} row_ror:8 row_mask:0xf bank_mask:0xf")
    I(f"v_cvt_pk_bf16_f32 v{DG}, v{DG}, v{DG}")
    I("s_lshr_b32 s4, s2, 3"); I("s_and_b32 s4, s4, 15")
    I("s_lshr_b32 s5, s4, 2"); I("s_lshl_b32 s5, s5, 12")
    I("s_and_b32 s4, s4, 3"); I("s_lshl_b32 s4, s4, 6"); I("s_add_u32 s5, s5, s4")
    I("s_lshr_b32 s4, s2, 7"); I("s_lshl_b32 s4, s4, 11"); I("s_add_u32 s5, s5, s4")
    I("s_and_b32 s4, s2, 7"); I("s_lshl_b32 s4, s4, 8"); I("s_add_u32 s5, s5, s4")
    I(f"v_and_b32 v246, 7, {vLane}"); I("v_lshlrev_b32 v246, 3, v246")
    I(f"v_and_b32 v247, 1, {vG}"); I("v_lshl_add_u32 v246, v247, 2, v246")
    I(f"v_lshrrev_b32 v247, 1, {vG}"); I("v_lshl_add_u32 v246, v247, 1, v246")
    I("v_add_u32 v246, s5, v246")
    I("s_mov_b32 exec_lo, 0x00ff00ff"); I("s_mov_b32 exec_hi, 0x00ff00ff")
    I(f"buffer_store_short v{DG}, v246, {sOUT}, 0 offen")
    I("s_mov_b64 exec, -1")
    I("s_cmp_lg_u32 s2, 0")
    I("s_cbranch_scc1 L_fin")
    I(f"v_mov_b32 v246, 0"); I(f"v_mov_b32 v247, {sEP1}")
    I("s_mov_b64 exec, 1")
    I(f"buffer_store_dword v247, v246, {sWS}, 0 offen")
    I("s_mov_b64 exec, -1")
    A.label("L_fin")
    if ts:
        stamp("end")
        I("s_lshl_b32 s4, s2, 3"); I(f"s_add_u32 s4, s4, {sW}"); I("s_lshl_b32 s4, s4, 7"); I(f"s_add_u32 s4, s4, {WS_TS}")
        I(f"v_lshlrev_b32 v246, 2, {vLane}"); I("v_add_u32 v246, s4, v246")
        I("s_mov_b32 exec_lo, -1"); I("s_mov_b32 exec_hi, 0")
        I(f"buffer_store_dword {vTS}, v246, {sWS}, 0 offen")
    A.raw("L_end:")
    I("s_endpgm")
    A.raw(f""".section .rodata,"a"
.p2align 6
.amdhsa_kernel {NAME}_kernel
  .amdhsa_next_free_vgpr 256
  .amdhsa_next_free_sgpr 102
  .amdhsa_accum_offset 256
  .amdhsa_group_segment_fixed_size 0
  .amdhsa_kernarg_size 104
  .amdhsa_user_sgpr_count 2
  .amdhsa_user_sgpr_kernarg_segment_ptr 1
  .amdhsa_system_sgpr_workgroup_id_x 1
.end_amdhsa_kernel""")
    return A.text()

if __name__ == "__main__":
    ts = "--ts" in sys.argv
    out = sys.argv[1]
    opt = {}
    for a in sys.argv[2:]:
        if "=" in a:
            k, v = a.split("="); opt[k] = int(v)
    open(out, "w").write(gen(ts=ts, opt=opt))
```

```python
import sys, struct
sys.path.insert(0, "dev")
from asmlib import Asm
NAME = "concat_heads__gqa_block_cached__sliding_block_cached__decode"
HEADER = open("cdna_kernels/" + NAME + ".s.ref").read().split("; Override launch geometry")[0]

WS_OP = 0x200000; WS_QP = 0x400000; WS_LSE = 0x420000; WS_FP = 0x440000; WS_TS = 0x800000
L_RED = 0; RED_STR = 2064
L_Q = 33024; Q_HS = 272; Q_BS = 2176
L_MX = 37376; L_LS = 38400
L_OB = 39424; L_OA = 72448; O_STR = 4128
LDS_BYTES = 105472
SCALE = (128 ** -0.5) * 1.4426950408889634
def f32(x): return "0x%08x" % struct.unpack("<I", struct.pack("<f", x))[0]

sKA, sVA, sKB, sVB, sWQ, sWO, sX, sWS, sOUT = [f"s[{44+4*i}:{47+4*i}]" for i in range(9)]
sW = "s3"
sP, sS, sBK, sCB = "s16", "s17", "s18", "s19"
sTAG = "s99"; sEP1 = "s100"; sC = "s101"
vLane, vG, vN = "v1", "v2", "v3"
vKA, vKB, vVA, vVB, vWQ, vWO, vX = "v4", "v5", "v6", "v7", "v8", "v9", "v10"
vSE, vSO, vSE0, vSO0, vSE1, vSO1 = "v11", "v12", "v13", "v14", "v15", "v244"
vT = "v245"; vB = "v248"; vXb = "v249"; vRW = "v250"; vRR = "v251"; vTS = "v255"
KR, VR, WR, SR, GR = 16, 96, 176, 208, 228
def vr(b, n=4): return f"v[{b}:{b+n-1}]"

def gen(ts=False, opt=None):
    opt = opt or {}
    xcd = opt.get("xcd", 1)
    A = Asm(); I = A.I
    def S(*lines):
        for l in lines: I(l)
    nts = [0]
    def stamp(name=""):
        if not ts: return
        k = nts[0]; nts[0] += 1
        assert k < 32
        S("s_memrealtime s[4:5]", "s_waitcnt lgkmcnt(0)", f"v_writelane_b32 {vTS}, s4, {k}")
    def transpose(b):
        for (x, y) in ((1,4),(2,8),(3,12),(6,9),(7,13),(11,14)):
            I(f"v_swap_b32 v{b+x}, v{b+y}")
    def tag4(b):
        for i in range(4): I(f"v_perm_b32 v{b+i}, v{b+i}, {vT}, s{8+i}")
    def chk4(b, tmp, first):
        I(f"v_perm_b32 {tmp}, v{b+1}, v{b}, s12")
        I(f"v_perm_b32 {tmp}, v{b+2}, {tmp}, s13")
        I(f"v_perm_b32 {tmp}, v{b+3}, {tmp}, s14")
        if first: I(f"v_cmp_ne_u32 s[6:7], {tmp}, {vT}")
        else: S(f"v_cmp_ne_u32 vcc, {tmp}, {vT}", "s_or_b64 s[6:7], s[6:7], vcc")
    def write_acc(vaddr, d):
        I(f"ds_write2_b64 {vaddr}, {vr(d,2)}, {vr(d+4,2)} offset0:0 offset1:1")
        I(f"ds_write2_b64 {vaddr}, {vr(d+8,2)}, {vr(d+12,2)} offset0:2 offset1:3")
        I(f"ds_write2_b64 {vaddr}, {vr(d+2,2)}, {vr(d+6,2)} offset0:64 offset1:65")
        I(f"ds_write2_b64 {vaddr}, {vr(d+10,2)}, {vr(d+14,2)} offset0:66 offset1:67")
    def barrier():
        S("s_waitcnt lgkmcnt(0)", "s_barrier")
    def sum4(D):
        I(f"v_pk_add_f32 {vr(D,2)}, {vr(D,2)}, {vr(D+4,2)}")
        I(f"v_pk_add_f32 {vr(D+2,2)}, {vr(D+2,2)}, {vr(D+6,2)}")
        I(f"v_pk_add_f32 {vr(D+8,2)}, {vr(D+8,2)}, {vr(D+12,2)}")
        I(f"v_pk_add_f32 {vr(D+10,2)}, {vr(D+10,2)}, {vr(D+14,2)}")
        I(f"v_pk_add_f32 {vr(D,2)}, {vr(D,2)}, {vr(D+8,2)}")
        I(f"v_pk_add_f32 {vr(D+2,2)}, {vr(D+2,2)}, {vr(D+10,2)}")
    def dpp(op, r, ctl): I(f"{op}_dpp v{r}, v{r}, v{r} {ctl} row_mask:0xf bank_mask:0xf")
    def afrags(xb, af):
        for u, (se, so) in enumerate(((vSE0, vSO0), (vSE1, vSO1))):
            I(f"v_perm_b32 v{af+4*u+0}, v{xb}, v{xb}, {se}")
            I(f"v_perm_b32 v{af+4*u+1}, v{xb}, v{xb}, {so}")
            I(f"v_perm_b32 v{af+4*u+2}, v{xb+1}, v{xb+1}, {se}")
            I(f"v_perm_b32 v{af+4*u+3}, v{xb+1}, v{xb+1}, {so}")
    def projmm(Wb, af, D, u):
        for r in range(4):
            c = "0" if u == 0 else vr(D+4*r)
            I(f"v_mfma_f32_16x16x32_bf16 {vr(D+4*r)}, {vr(af+4*u)}, {vr(Wb+16*u+4*r)}, {c}")
    def red_publish(D, vaddr, tag):
        for j in range(4): I(f"ds_read_b128 {vr(D+4*j)}, {vRR} offset:{L_RED+j*RED_STR}")
        I("s_waitcnt lgkmcnt(0)")
        sum4(D)
        a0, a1, a2, a3 = [f"v{D+j}" for j in range(4)]
        S(f"v_permlane32_swap_b32 {a0}, {a2}", f"v_permlane32_swap_b32 {a1}, {a3}",
          f"v_add_f32 {a0}, {a0}, {a2}", f"v_add_f32 {a1}, {a1}, {a3}",
          f"v_permlane16_swap_b32 {a0}, {a1}", f"v_add_f32 {a0}, {a0}, {a1}",
          f"v_mov_b32 {a1}, {a0}", f"v_permlane16_swap_b32 {a0}, {a1}",
          f"v_mov_b32 {a2}, {a0}", f"v_mov_b32 {a3}, {a1}",
          f"v_permlane32_swap_b32 {a0}, {a2}", f"v_permlane32_swap_b32 {a1}, {a3}")
        tag4(D)
        S("s_mov_b64 exec, 0xffff")
        I(f"buffer_store_dwordx4 {vr(D)}, {vaddr}, {sWS}, 0 offen sc1", tag)
        I("s_mov_b64 exec, -1")

    A.raw(HEADER.rstrip())
    A.raw(f"; @launch grid=(256,1,1) block=(512,1,1) lds={LDS_BYTES}")
    A.raw('.amdgcn_target "amdgcn-amd-amdhsa--gfx950"\n.text')
    A.raw(f".globl {NAME}_kernel\n.p2align 8\n.type {NAME}_kernel,@function\n{NAME}_kernel:")
    S("s_cmp_ge_u32 s2, 256", "s_cbranch_scc1 L_end")
    S("s_load_dwordx16 s[16:31], s[0:1], 0", "s_load_dwordx8 s[32:39], s[0:1], 64", "s_load_dwordx2 s[40:41], s[0:1], 96")
    if ts: I(f"v_mov_b32 {vTS}, 0")
    stamp("start")
    S("v_lshrrev_b32 v246, 6, v0", f"v_and_b32 {vLane}, 63, v0", f"v_readfirstlane_b32 {sW}, v246",
      f"v_lshrrev_b32 {vG}, 4, {vLane}", f"v_and_b32 {vN}, 15, {vLane}", f"v_lshlrev_b32 v247, 4, {vN}")
    S("s_and_b32 s10, s2, 3", "s_lshl_b32 s10, s10, 8", f"s_lshl_b32 s11, {sW}, 5", "s_add_u32 s10, s10, s11",
      "s_lshl_b32 s12, s10, 13", "s_lshr_b32 s13, s2, 2", "s_and_b32 s13, s13, 31", "s_lshl_b32 s13, s13, 8", "s_add_u32 s12, s12, s13")
    S(f"v_lshl_add_u32 v246, {vG}, 15, v247", f"v_add_u32 {vWQ}, s12, v246")
    S(f"v_bfe_u32 {vB}, {vLane}, 1, 2", f"v_bfe_u32 {vXb}, {vLane}, 3, 1", f"v_lshlrev_b32 v246, 11, {vB}",
      f"v_lshl_add_u32 v246, {vXb}, 5, v246", f"v_lshl_add_u32 v246, {vG}, 3, v246", "s_lshl_b32 s10, s10, 1", f"v_add_u32 {vX}, s10, v246")
    for u in range(2):
        for t in range(4): I(f"s_mov_b32 s{80+4*u+t}, {t*8192+u*131072}")
    S("s_mov_b32 s62, 8388608", "s_mov_b32 s63, 0x00020000", "s_mov_b32 s70, 8192", "s_mov_b32 s71, 0x00020000")
    if xcd:
        S("s_and_b32 s4, s2, 7", "s_lshl_b32 s4, s4, 1", "s_bfe_u32 s5, s2, 0x10003", "s_add_u32 s4, s4, s5", "s_lshr_b32 s5, s2, 4")
        S("s_lshr_b32 s14, s2, 6", "s_lshl_b32 s14, s14, 3", "s_and_b32 s15, s2, 7", "s_add_u32 s14, s14, s15", "s_bfe_u32 s15, s2, 0x30003")
    else:
        S("s_lshr_b32 s4, s2, 4", "s_and_b32 s5, s2, 15", "s_lshr_b32 s14, s2, 3", "s_and_b32 s15, s2, 7")
    S("s_cmp_ge_u32 s2, 128", "s_waitcnt lgkmcnt(0)")
    S("s_cselect_b32 s60, s32, s22", "s_cselect_b32 s61, s33, s23", "s_cselect_b32 s68, s26, s16", "s_cselect_b32 s69, s27, s17")
    I(f"buffer_load_dwordx2 v[232:233], {vX}, {sX}, 0 offen", "x")
    for u in range(2):
        for t in range(4):
            I(f"buffer_load_dwordx4 {vr(WR+16*u+4*t)}, {vWQ}, {sWQ}, s{80+4*u+t} offen nt", f"wq{u}")
    I("s_load_dword s42, s[40:41], 0")
    S("s_lshl_b32 s6, s4, 21", "s_lshl_b32 s7, s5, 17", "s_add_u32 s7, s7, s6", f"s_lshl_b32 s8, {sW}, 14", "s_add_u32 s7, s7, s8",
      "s_lshl_b32 s9, s5, 15", "s_add_u32 s9, s9, s6", f"s_lshl_b32 s8, {sW}, 12", "s_add_u32 s9, s9, s8", f"s_add_u32 s9, s9, {6144*256}")
    S(f"v_lshlrev_b32 v246, 8, {vN}", f"v_lshl_add_u32 v246, {vG}, 4, v246", f"v_add_u32 {vKA}, s7, v246", f"v_add_u32 {vKB}, s9, v246",
      f"v_lshl_add_u32 v246, {vG}, 10, v247", f"v_add_u32 {vVA}, s7, v246", f"v_add_u32 {vVB}, s9, v246")
    for (d, s) in ((52,28),(44,18),(48,20),(56,30)):
        S(f"s_mov_b32 s{d}, s{s}", f"s_mov_b32 s{d+1}, s{s+1}", f"s_mov_b32 s{d+2}, 33554432", f"s_mov_b32 s{d+3}, 0x00020000")
    for j in range(1, 4): I(f"s_mov_b32 s{95+j}, {4096*j}")
    if opt.get("b1", 1): I("s_barrier")
    def loadK(j):
        for st in range(4):
            if j == 0: I(f"buffer_load_dwordx4 {vr(KR+4*st)}, {vKB}, {sKB}, 0 offen offset:{64*st} nt", "K0")
            else:
                so = "0" if j == 1 else f"s{94+j}"
                I(f"buffer_load_dwordx4 {vr(KR+16*j+4*st)}, {vKA}, {sKA}, {so} offen offset:{64*st} nt", f"K{j}")
    def loadV(j):
        for t in range(4):
            if j == 0: I(f"buffer_load_dwordx4 {vr(VR+4*t)}, {vVB}, {sVB}, 0 offen offset:{256*t} nt", "V0")
            else:
                so = "0" if j == 1 else f"s{94+j}"
                I(f"buffer_load_dwordx4 {vr(VR+16*j+4*t)}, {vVA}, {sVA}, {so} offen offset:{256*t} nt", f"V{j}")
    WO = 48
    def loadWO(u):
        for t in range(4):
            I(f"buffer_load_dwordx4 {vr(WO+16*u+4*t)}, {vWO}, {sWO}, s{88+4*u+t} offen nt", f"wo{u}")
    npre = opt.get("npre", 1)
    for j in range(npre): loadK(j)
    S("s_cmp_ge_u32 s14, 16", "s_cselect_b32 s64, s34, s24", "s_cselect_b32 s65, s35, s25", "s_mov_b32 s66, 8388608", "s_mov_b32 s67, 0x00020000")
    S("s_and_b32 s6, s14, 15", "s_lshl_b32 s6, s6, 8", "s_add_u32 s6, s6, s11", "s_lshl_b32 s6, s6, 11", "s_lshl_b32 s7, s15, 8", "s_add_u32 s6, s6, s7")
    S(f"v_lshl_add_u32 v246, {vG}, 13, v247", f"v_add_u32 {vWO}, s6, v246")
    for u in range(2):
        for t in range(4): I(f"s_mov_b32 s{88+4*u+t}, {t*2048+u*32768}")
    S("s_mov_b32 s72, s40", "s_mov_b32 s73, s41", "s_mov_b32 s74, 268435456", "s_mov_b32 s75, 0x00020000")
    S("s_mov_b32 s76, s36", "s_mov_b32 s77, s37", "s_mov_b32 s78, 16384", "s_mov_b32 s79, 0x00020000")
    S(f"s_mov_b32 {sP}, s4", f"s_mov_b32 {sS}, s5", f"s_mov_b32 {sBK}, s14", f"s_mov_b32 {sCB}, s15")
    S(f"v_and_b32 v246, 1, {vLane}", "v_cmp_eq_u32 vcc, 0, v246", "v_mov_b32 v246, 0x01000c0c", "v_mov_b32 v247, 0x0c0c0100",
      f"v_cndmask_b32 {vSE}, v246, v247, vcc", "v_mov_b32 v246, 0x03020c0c", "v_mov_b32 v247, 0x0c0c0302", f"v_cndmask_b32 {vSO}, v246, v247, vcc",
      f"v_cmp_eq_u32 vcc, 0, {vXb}", "v_mov_b32 v246, 0x0c0c0c0c",
      f"v_cndmask_b32 {vSE0}, v246, {vSE}, vcc", f"v_cndmask_b32 {vSO0}, v246, {vSO}, vcc",
      f"v_cndmask_b32 {vSE1}, {vSE}, v246, vcc", f"v_cndmask_b32 {vSO1}, {vSO}, v246, vcc")
    for i in range(4): I(f"s_mov_b32 s{8+i}, {0x07060500+i:#x}")
    S("s_mov_b32 s12, 0x0c0c0400", "s_mov_b32 s13, 0x0c040100", "s_mov_b32 s14, 0x04020100", f"s_mov_b32 {sC}, {f32(SCALE)}")
    S(f"v_lshrrev_b32 v246, 1, {vG}", f"v_lshl_add_u32 v246, {sW}, 1, v246", f"v_mul_u32_u24 v246, {RED_STR}, v246",
      f"v_and_b32 v247, 1, {vG}", "v_lshl_add_u32 v246, v247, 10, v246", f"v_lshl_add_u32 {vRW}, {vN}, 5, v246",
      f"v_mul_u32_u24 v246, {4*RED_STR}, {vG}", f"v_lshl_add_u32 v247, {sW}, 4, {vN}", f"v_lshl_add_u32 {vRR}, v247, 4, v246")
    S("s_lshr_b32 s4, s2, 2", "s_and_b32 s4, s4, 31", "s_lshl_b32 s4, s4, 12", "s_lshr_b32 s5, s2, 7", "s_lshl_b32 s5, s5, 2",
      "s_and_b32 s6, s2, 3", "s_add_u32 s5, s5, s6", "s_lshl_b32 s5, s5, 9", "s_add_u32 s4, s4, s5", f"s_add_u32 s4, s4, {WS_QP}")
    S(f"s_lshr_b32 s5, {sW}, 1", "s_lshl_b32 s5, s5, 19", "s_add_u32 s4, s4, s5", f"s_and_b32 s5, {sW}, 1", "s_lshl_b32 s5, s5, 8", "s_add_u32 s4, s4, s5",
      f"v_lshlrev_b32 v246, 4, {vN}", "v_add_u32 v252, s4, v246")
    S(f"s_and_b32 s5, {sP}, 3", "s_lshl_b32 s5, s5, 3", f"s_add_u32 s5, s5, {sW}", "s_lshl_b32 s5, s5, 12",
      f"s_lshr_b32 s4, {sP}, 2", "s_lshl_b32 s4, s4, 19", "s_add_u32 s5, s5, s4", f"s_add_u32 s5, s5, {WS_QP}")
    S(f"v_lshlrev_b32 v246, 4, {vLane}", "v_add_u32 v253, s5, v246")
    S("s_waitcnt lgkmcnt(0)", f"s_add_u32 {sEP1}, s42, 1", f"s_mul_i32 {sTAG}, {sEP1}, 0x9e3779b1",
      f"s_lshr_b32 s4, {sTAG}, 15", f"s_xor_b32 {sTAG}, {sTAG}, s4", f"s_mul_i32 {sTAG}, {sTAG}, 0x85ebca6b",
      f"s_lshr_b32 s4, {sTAG}, 13", f"s_xor_b32 {sTAG}, {sTAG}, s4", f"v_mov_b32 {vT}, {sTAG}")

    A.wait_vm("x")
    afrags(232, 224)
    for u in range(2):
        A.wait_vm(f"wq{u}"); transpose(WR+16*u); projmm(WR, 224, SR, u)
    stamp("wq arrived")
    write_acc(vRW, SR)
    npre2 = opt.get("npre2", npre)
    for j in range(npre, npre2): loadK(j)
    barrier()
    red_publish(SR, "v252", "qst")
    I("s_barrier")
    stamp("q published")
    for j in range(npre2, 5): loadK(j)
    def gatherQ(tag):
        for i in range(4): I(f"buffer_load_dwordx4 {vr(GR+4*i)}, v253, {sWS}, 0 offen offset:{1024*i} sc1", tag)
    gatherQ("G")
    I("s_barrier")
    nv1 = opt.get("nv1", 2)
    for j in range(nv1): loadV(j)
    S(f"v_lshrrev_b32 v246, 5, {vLane}", f"v_mul_u32_u24 v246, {Q_BS}, v246", f"v_and_b32 v247, 31, {vLane}", "v_lshl_add_u32 v246, v247, 3, v246",
      f"s_mul_i32 s4, {sW}, {Q_HS}", "v_add_u32 v252, s4, v246")
    S(f"v_lshrrev_b32 v247, 1, {vN}", f"v_mul_u32_u24 v247, {Q_HS}, v247", f"v_lshl_add_u32 v254, {vG}, 4, v247")
    I("s_mov_b32 s15, 0")
    A.wait_vm("G")
    stamp("G arrived")
    A.label("L_qchk")
    for i in range(4): chk4(GR+4*i, "v246", i == 0)
    S("s_cmp_eq_u64 s[6:7], 0", "s_cbranch_scc1 L_qok", "s_add_u32 s15, s15, 1", "s_cmp_gt_u32 s15, 20000", "s_cbranch_scc1 L_qok")
    nvm = len(A.vm)
    gatherQ("G2")
    S("s_waitcnt vmcnt(0)", "s_branch L_qchk")
    del A.vm[nvm:]
    A.label("L_qok")
    stamp("G ok")
    for j in range(0, 4, 2):
        I(f"v_pk_add_f32 {vr(GR+j,2)}, {vr(GR+j,2)}, {vr(GR+4+j,2)}")
        I(f"v_pk_add_f32 {vr(GR+8+j,2)}, {vr(GR+8+j,2)}, {vr(GR+12+j,2)}")
    for j in range(4): I(f"v_permlane32_swap_b32 v{GR+j}, v{GR+8+j}")
    for j in range(0, 4, 2): I(f"v_pk_add_f32 {vr(GR+j,2)}, {vr(GR+j,2)}, {vr(GR+8+j,2)}")
    S(f"v_cvt_pk_bf16_f32 v{GR}, v{GR}, v{GR+1}", f"v_cvt_pk_bf16_f32 v{GR+1}, v{GR+2}, v{GR+3}")
    I(f"ds_write_b64 v252, {vr(GR,2)} offset:{L_Q}")
    barrier()
    QA, QB = WR, WR+16
    for st in range(4): I(f"ds_read_b128 {vr(QB+4*st)}, v254 offset:{L_Q+Q_BS+64*st}")
    for st in range(4): I(f"ds_read_b128 {vr(QA+4*st)}, v254 offset:{L_Q+64*st}")
    S(f"v_lshrrev_b32 v246, 5, {vLane}", f"v_lshl_add_u32 v246, v246, 4, {vN}", "v_lshlrev_b32 v246, 5, v246",
      f"v_lshl_add_u32 v253, {sW}, 2, v246", f"v_lshlrev_b32 v252, 5, {vN}")
    I("s_waitcnt lgkmcnt(0)")
    for st in range(4):
        for j in range(5):
            q = QB if j == 0 else QA
            c = "0" if st == 0 else vr(SR+4*j)
            I(f"v_mfma_f32_16x16x32_bf16 {vr(SR+4*j)}, {vr(KR+16*j+4*st)}, {vr(q+4*st)}, {c}")
    stamp("QK done")
    TM = 80
    mA, mB = f"v{TM}", f"v{TM+1}"
    S(f"v_max3_f32 {mB}, v{SR}, v{SR+1}, v{SR+2}", f"v_max_f32 {mB}, {mB}, v{SR+3}", f"v_max3_f32 {mA}, v{SR+4}, v{SR+5}, v{SR+6}")
    for k in range(SR+7, SR+19, 2): I(f"v_max3_f32 {mA}, {mA}, v{k}, v{k+1}")
    I(f"v_max_f32 {mA}, {mA}, v{SR+19}")
    def xreduce(a, b, op, t):
        S(f"v_permlane32_swap_b32 {a}, {b}", f"{op} {a}, {a}, {b}", f"v_mov_b32 {t}, {a}", f"v_permlane16_swap_b32 {a}, {t}", f"{op} {a}, {a}, {t}")
    xreduce(mA, mB, "v_max_f32", f"v{TM+2}")
    I(f"ds_write_b32 v253, {mA} offset:{L_MX}")
    barrier()
    R = WR
    for k in range(4): I(f"ds_read_b128 {vr(R+4*k)}, v252 offset:{L_MX+(k>>1)*512+(k&1)*16}")
    I("s_waitcnt lgkmcnt(0)")
    for (m, b) in ((mA, R), (mB, R+8)):
        S(f"v_max3_f32 {m}, v{b}, v{b+1}, v{b+2}", f"v_max3_f32 {m}, {m}, v{b+3}, v{b+4}", f"v_max3_f32 {m}, {m}, v{b+5}, v{b+6}", f"v_max_f32 {m}, {m}, v{b+7}")
    S(f"v_mul_f32 {mA}, {sC}, {mA}", f"v_mul_f32 {mB}, {sC}, {mB}")
    for k in range(20):
        I(f"v_fma_f32 v{SR+k}, v{SR+k}, {sC}, -{mB if k < 4 else mA}")
    for k in range(20): I(f"v_exp_f32 v{SR+k}, v{SR+k}")
    lA, lB = f"v{TM+4}", f"v{TM+5}"
    S(f"v_add_f32 {lB}, v{SR}, v{SR+1}", f"v_add_f32 {lB}, {lB}, v{SR+2}", f"v_add_f32 {lB}, {lB}, v{SR+3}", f"v_add_f32 {lA}, v{SR+4}, v{SR+5}")
    for k in range(6, 20): I(f"v_add_f32 {lA}, {lA}, v{SR+k}")
    xreduce(lA, lB, "v_add_f32", f"v{TM+2}")
    I(f"ds_write_b32 v253, {lA} offset:{L_LS}")
    S(f"s_lshl_b32 s4, {sW}, 1", f"v_readlane_b32 s42, {mA}, s4", f"v_readlane_b32 s43, {mB}, s4")
    for j in range(5):
        b = SR+4*j
        S(f"v_cvt_pk_bf16_f32 v{TM+6}, v{b}, v{b+1}", f"v_cvt_pk_bf16_f32 v{TM+7}, v{b+2}, v{b+3}",
          f"v_perm_b32 v{b}, v{TM+6}, v{TM+6}, {vSE}", f"v_perm_b32 v{b+1}, v{TM+6}, v{TM+6}, {vSO}",
          f"v_perm_b32 v{b+2}, v{TM+7}, v{TM+7}, {vSE}", f"v_perm_b32 v{b+3}, v{TM+7}, v{TM+7}, {vSO}")
    stamp("softmax done")
    nv2 = opt.get("nv2", 3)
    for j in range(nv1, nv2): loadV(j)
    OA, OB = 16, 32
    def pv(j, O, first):
        A.wait_vm(f"V{j}")
        transpose(VR+16*j)
        for r in range(4):
            c = "0" if first else vr(O+4*r)
            I(f"v_mfma_f32_16x16x32_bf16 {vr(O+4*r)}, {vr(SR+4*j)}, {vr(VR+16*j+4*r)}, {c}")
    vOW, vOR, vOS, vLSs, vLSr = [f"v{TM+8+i}" for i in range(5)]
    S(f"s_mul_i32 s4, {sW}, {O_STR}", f"v_lshlrev_b32 v246, 10, {vG}", f"v_lshl_add_u32 v246, {vN}, 5, v246", f"v_add_u32 {vOW}, s4, v246",
      f"v_lshrrev_b32 v246, 5, {vLane}", f"v_mul_u32_u24 v246, {4*O_STR}, v246", f"v_and_b32 v247, 31, {vLane}", f"v_lshl_add_u32 v247, {sW}, 5, v247", f"v_lshl_add_u32 {vOR}, v247, 4, v246")
    S(f"s_and_b32 s4, {sP}, 3", "s_lshl_b32 s4, s4, 3", f"s_add_u32 s4, s4, {sW}", f"s_lshr_b32 s6, {sP}, 2", "s_lshl_b32 s6, s6, 19",
      "s_lshl_b32 s5, s4, 13", "s_add_u32 s5, s5, s6", f"s_lshl_b32 s7, {sS}, 7", "s_add_u32 s5, s5, s7", f"s_add_u32 s5, s5, {WS_OP}")
    S("v_bfe_u32 v246, v0, 3, 2", "v_lshlrev_b32 v246, 11, v246", "v_and_b32 v247, 7, v0", "v_lshl_add_u32 v246, v247, 4, v246", f"v_add_u32 {vOS}, s5, v246")
    S("s_lshl_b32 s5, s4, 7", "s_add_u32 s5, s5, s6", f"s_lshl_b32 s7, {sS}, 3", "s_add_u32 s5, s5, s7", f"s_add_u32 s5, s5, {WS_LSE}",
      f"v_mov_b32 {vLSs}, s5", f"s_lshl_b32 s4, {sW}, 6", f"v_mov_b32 {vLSr}, s4", f"s_mov_b32 s20, {4*8*8192}")
    def publishO(br, O, Lb):
        I(f"v_add_u32 v246, {Lb}, {vOW}")
        write_acc("v246", O)
        I(f"v_add_u32 v247, {Lb}, {vOR}")
        barrier()
        for j in range(4): I(f"ds_read_b128 {vr(R+4*j)}, v247 offset:{j*O_STR}")
        for k in range(2): I(f"ds_read_b128 {vr(R+16+4*k)}, {vLSr} offset:{L_LS+br*512+16*k}")
        I("s_waitcnt lgkmcnt(0)")
        I(f"v_pk_add_f32 {vr(R+16,2)}, {vr(R+16,2)}, {vr(R+18,2)}")
        I(f"v_pk_add_f32 {vr(R+20,2)}, {vr(R+20,2)}, {vr(R+22,2)}")
        I(f"v_pk_add_f32 {vr(R+16,2)}, {vr(R+16,2)}, {vr(R+20,2)}")
        I(f"v_add_f32 v{R+16}, v{R+16}, v{R+17}")
        S(f"v_rcp_f32 v{R+18}, v{R+16}", f"v_log_f32 v{R+20}, v{R+16}")
        sum4(R)
        S(f"v_add_f32 v{R+20}, s{42+br}, v{R+20}", f"v_mov_b32 v{R+21}, {vT}")
        S(f"v_permlane32_swap_b32 v{R}, v{R+1}", f"v_permlane32_swap_b32 v{R+2}, v{R+3}",
          f"v_add_f32 v{R}, v{R}, v{R+1}", f"v_add_f32 v{R+2}, v{R+2}, v{R+3}",
          f"v_mul_f32 v{R}, v{R}, v{R+18}", f"v_mul_f32 v{R+2}, v{R+2}, v{R+18}",
          f"v_mov_b32 v{R+1}, v{R}", f"v_mov_b32 v{R+3}, v{R+2}",
          f"v_permlane32_swap_b32 v{R}, v{R+1}", f"v_permlane32_swap_b32 v{R+2}, v{R+3}")
        tag4(R)
        S("s_mov_b32 exec_lo, -1", "s_mov_b32 exec_hi, 0")
        I(f"buffer_store_dwordx4 {vr(R)}, {vOS}, {sWS}, {'0' if br == 0 else 's20'} offen sc1", f"ost{br}")
        I("s_mov_b64 exec, 1")
        I(f"buffer_store_dwordx2 {vr(R+20,2)}, {vLSs}, {sWS}, {'0' if br == 0 else 's96'} offen sc1", f"ost{br}")
        I("s_mov_b64 exec, -1")
    pv(0, OB, True)
    publishO(1, OB, L_OB)
    if nv2 < 5: I("s_barrier")
    stamp("B published")
    for j in range(nv2, 5): loadV(j)
    wosplit = opt.get("wosplit", 0)
    wolate = opt.get("wolate", 0)
    if wolate == 0:
        for u in range(wosplit): loadWO(u)
    S(f"s_lshr_b32 s5, {sBK}, 2", f"s_lshl_b32 s4, {sBK}, 1", f"s_lshr_b32 s6, {sW}, 2", "s_add_u32 s4, s4, s6", "s_and_b32 s4, s4, 7",
      "s_lshl_b32 s5, s5, 3", "s_add_u32 s5, s5, s4",
      "s_lshl_b32 s6, s5, 7", f"s_add_u32 s6, s6, {WS_LSE}",
      "s_lshl_b32 s5, s5, 2", f"s_and_b32 s7, {sW}, 3", "s_add_u32 s5, s5, s7", "s_lshl_b32 s5, s5, 11", f"s_add_u32 s5, s5, {WS_OP}")
    S(f"v_lshlrev_b32 v247, 19, {vG}", f"v_lshl_add_u32 v246, {vN}, 4, v247", "v_add_u32 v252, s5, v246",
      f"v_lshl_add_u32 v246, {vN}, 3, v247", "v_add_u32 v253, s6, v246")
    S(f"v_lshlrev_b32 v254, 6, {vB}", f"v_lshl_add_u32 v254, {vXb}, 4, v254", f"v_lshl_add_u32 v254, {vG}, 2, v254")
    vFS, vFG = vKA, vKB
    S(f"s_lshr_b32 s4, {sBK}, 4", "s_lshl_b32 s4, s4, 3", f"s_add_u32 s4, s4, {sCB}", "s_lshl_b32 s4, s4, 13", f"s_add_u32 s4, s4, {WS_FP}",
      f"s_and_b32 s5, {sBK}, 15", "s_lshl_b32 s6, s5, 7", "s_add_u32 s6, s6, s4")
    S(f"s_lshr_b32 s7, {sW}, 1", "s_lshl_b32 s7, s7, 19", "s_add_u32 s6, s6, s7", f"s_and_b32 s7, {sW}, 1", "s_lshl_b32 s7, s7, 12", "s_add_u32 s6, s6, s7",
      f"v_lshrrev_b32 v246, 3, {vN}", "v_lshlrev_b32 v246, 11, v246", f"v_and_b32 v247, 7, {vN}", "v_lshl_add_u32 v246, v247, 4, v246", f"v_add_u32 {vFS}, s6, v246")
    S("s_lshr_b32 s6, s5, 2", "s_lshl_b32 s6, s6, 19", "s_add_u32 s6, s6, s4", "s_and_b32 s5, s5, 3", "s_lshl_b32 s5, s5, 11", "s_add_u32 s6, s6, s5")
    S(f"v_lshlrev_b32 v246, 4, {vLane}", f"v_add_u32 {vFG}, s6, v246")
    for j in range(1, 5):
        pv(j, OA, j == 1)
        if wolate == j:
            for u in range(wosplit): loadWO(u)
    stamp("PV done")
    publishO(0, OA, L_OA)
    I("s_barrier")
    stamp("A published")
    for u in range(wosplit, 2): loadWO(u)
    if wosplit < 2: I("s_barrier")
    DG, LG, TT = 96, 128, 144
    def gatherL(tag):
        I(f"buffer_load_dwordx2 {vr(LG,2)}, v253, {sWS}, 0 offen sc1", tag)
    def gatherO(tag):
        for i in range(8): I(f"buffer_load_dwordx4 {vr(DG+4*i)}, v252, {sWS}, 0 offen offset:{256*i} sc1", tag)
    gatherL("GO"); gatherO("GO")
    A.wait_vm("wo0"); transpose(WO)
    A.wait_vm("wo1"); transpose(WO+16)
    stamp("wo arrived")
    I("s_mov_b32 s15, 0")
    A.wait_vm("GO")
    stamp("GO arrived")
    A.label("L_ochk")
    for i in range(8): chk4(DG+4*i, "v246", i == 0)
    S(f"v_cmp_ne_u32 vcc, v{LG+1}, {vT}", "s_or_b64 s[6:7], s[6:7], vcc", "s_cmp_eq_u64 s[6:7], 0", "s_cbranch_scc1 L_ook")
    nvm = len(A.vm)
    A.label("L_opoll")
    S("s_add_u32 s15, s15, 1", "s_cmp_gt_u32 s15, 20000", "s_cbranch_scc1 L_ook")
    gatherL("GO2")
    S("s_waitcnt vmcnt(0)", f"v_cmp_ne_u32 vcc, v{LG+1}, {vT}", "s_cbranch_vccnz L_opoll")
    gatherO("GO2")
    S("s_waitcnt vmcnt(0)", "s_branch L_ochk")
    del A.vm[nvm:]
    A.label("L_ook")
    stamp("GO ok")
    I(f"v_mov_b32 v{TT}, v{LG}")
    for k in (8, 4, 2, 1): dpp("v_max_f32", TT, f"row_ror:{k}")
    S(f"v_sub_f32 v{LG}, v{LG}, v{TT}", f"v_exp_f32 v{LG}, v{LG}", f"v_mov_b32 v{TT+1}, v{LG}")
    for k in (8, 4, 2, 1): dpp("v_add_f32", TT+1, f"row_ror:{k}")
    S(f"v_rcp_f32 v{TT+1}, v{TT+1}", f"v_mul_f32 v{LG}, v{LG}, v{TT+1}")
    Wt = LG+2
    for i in range(8):
        I(f"v_mov_b32_dpp v{Wt+i}, v{LG} row_newbcast:{2*i} row_mask:0xf bank_mask:0x3")
        I(f"v_mov_b32_dpp v{Wt+i}, v{LG} row_newbcast:{2*i+1} row_mask:0xf bank_mask:0xc")
    AC = TT+4
    for j in range(4): I(f"v_mul_f32 v{AC+j}, v{Wt}, v{DG+j}")
    for i in range(1, 8):
        for j in range(4): I(f"v_fmac_f32 v{AC+j}, v{Wt+i}, v{DG+4*i+j}")
    for j in range(4): dpp("v_add_f32", AC+j, "row_ror:8")
    S(f"v_cvt_pk_bf16_f32 v{TT+10}, v{AC}, v{AC+1}", f"v_cvt_pk_bf16_f32 v{TT+11}, v{AC+2}, v{AC+3}",
      f"ds_bpermute_b32 v{TT+8}, v254, v{TT+10}", f"ds_bpermute_b32 v{TT+9}, v254, v{TT+11}", "s_waitcnt lgkmcnt(0)")
    afrags(TT+8, 224)
    for u in range(2): projmm(WO, 224, SR, u)
    write_acc(vRW, SR)
    barrier()
    red_publish(SR, vFS, "fst")
    stamp("F published")
    S(f"s_cmp_lg_u32 {sW}, 0", "s_cbranch_scc1 L_fin")
    S(f"s_and_b32 s4, {sBK}, 15", "s_lshr_b32 s5, s4, 2", "s_lshl_b32 s5, s5, 12", "s_and_b32 s4, s4, 3", "s_lshl_b32 s4, s4, 6", "s_add_u32 s5, s5, s4",
      f"s_lshr_b32 s4, {sBK}, 4", "s_lshl_b32 s4, s4, 11", "s_add_u32 s5, s5, s4", f"s_lshl_b32 s4, {sCB}, 8", "s_add_u32 s5, s5, s4")
    S(f"v_and_b32 v252, 7, {vLane}", "v_lshlrev_b32 v252, 3, v252", f"v_and_b32 v247, 1, {vG}", "v_lshl_add_u32 v252, v247, 2, v252",
      f"v_lshrrev_b32 v247, 1, {vG}", "v_lshl_add_u32 v252, v247, 1, v252", "v_add_u32 v252, s5, v252")
    I("s_mov_b32 s15, 0")
    A.label("L_fl")
    I(f"buffer_load_dwordx4 {vr(DG)}, {vFG}, {sWS}, 0 offen sc1")
    I(f"buffer_load_dwordx4 {vr(DG+4)}, {vFG}, {sWS}, 0 offen offset:1024 sc1")
    I("s_waitcnt vmcnt(0)")
    chk4(DG, "v246", True); chk4(DG+4, "v246", False)
    S("s_cmp_eq_u64 s[6:7], 0", "s_cbranch_scc1 L_fok", "s_add_u32 s15, s15, 1", "s_cmp_gt_u32 s15, 20000", "s_cbranch_scc0 L_fl")
    A.label("L_fok")
    stamp("F ok")
    S(f"v_pk_add_f32 {vr(DG,2)}, {vr(DG,2)}, {vr(DG+4,2)}", f"v_pk_add_f32 {vr(DG+2,2)}, {vr(DG+2,2)}, {vr(DG+6,2)}",
      f"v_permlane32_swap_b32 v{DG}, v{DG+1}", f"v_permlane32_swap_b32 v{DG+2}, v{DG+3}",
      f"v_add_f32 v{DG}, v{DG}, v{DG+1}", f"v_add_f32 v{DG+2}, v{DG+2}, v{DG+3}",
      f"v_permlane16_swap_b32 v{DG}, v{DG+2}", f"v_add_f32 v{DG}, v{DG}, v{DG+2}")
    dpp("v_add_f32", DG, "row_ror:8")
    I(f"v_cvt_pk_bf16_f32 v{DG}, v{DG}, v{DG}")
    S("s_mov_b32 exec_lo, 0x00ff00ff", "s_mov_b32 exec_hi, 0x00ff00ff")
    I(f"buffer_store_short v{DG}, v252, {sOUT}, 0 offen")
    S("s_mov_b64 exec, -1", "s_cmp_lg_u32 s2, 0", "s_cbranch_scc1 L_fin")
    S("v_mov_b32 v246, 0", f"v_mov_b32 v247, {sEP1}", "s_mov_b64 exec, 1")
    I(f"buffer_store_dword v247, v246, {sWS}, 0 offen")
    I("s_mov_b64 exec, -1")
    A.label("L_fin")
    if ts:
        nts[0] = 31; stamp("end")
        S("s_lshl_b32 s4, s2, 3", f"s_add_u32 s4, s4, {sW}", "s_lshl_b32 s4, s4, 7", f"s_add_u32 s4, s4, {WS_TS}",
          f"v_lshlrev_b32 v246, 2, {vLane}", "v_add_u32 v246, s4, v246", "s_mov_b32 exec_lo, -1", "s_mov_b32 exec_hi, 0")
        I(f"buffer_store_dword {vTS}, v246, {sWS}, 0 offen")
    A.raw("L_end:")
    I("s_endpgm")
    A.raw(f""".section .rodata,"a"
.p2align 6
.amdhsa_kernel {NAME}_kernel
  .amdhsa_next_free_vgpr 256
  .amdhsa_next_free_sgpr 102
  .amdhsa_accum_offset 256
  .amdhsa_group_segment_fixed_size 0
  .amdhsa_kernarg_size 104
  .amdhsa_user_sgpr_count 2
  .amdhsa_user_sgpr_kernarg_segment_ptr 1
  .amdhsa_system_sgpr_workgroup_id_x 1
.end_amdhsa_kernel""")
    return A.text()

if __name__ == "__main__":
    ts = "--ts" in sys.argv
    out = sys.argv[1]
    opt = {}
    for a in sys.argv[2:]:
        if "=" in a:
            k, v = a.split("="); opt[k] = int(v)
    open(out, "w").write(gen(ts=ts, opt=opt))
```

```python
import sys, struct
sys.path.insert(0, "dev")
from asmlib import Asm
NAME = "concat_heads__gqa_block_cached__sliding_block_cached__decode"
HEADER = open("cdna_kernels/" + NAME + ".s.ref").read().split("; Override launch geometry")[0]

WS_OP = 0x200000; WS_QP = 0x400000; WS_LSE = 0x420000; WS_FP = 0x440000; WS_TS = 0x800000
L_RED = 0; RED_STR = 2064
L_Q = 33024; Q_HS = 272; Q_BS = 2176
L_MX = 37376; L_LS = 38400
L_OB = 39424; L_OA = 72448; O_STR = 4128
LDS_BYTES = 105472
SCALE = (128 ** -0.5) * 1.4426950408889634
def f32(x): return "0x%08x" % struct.unpack("<I", struct.pack("<f", x))[0]

sKA, sVA, sKB, sVB, sWQ, sWO, sX, sWS, sOUT = [f"s[{44+4*i}:{47+4*i}]" for i in range(9)]
sW = "s3"
sP, sS, sBK, sCB = "s16", "s17", "s18", "s19"
sTAG = "s99"; sEP1 = "s100"; sC = "s101"
vLane, vG, vN = "v1", "v2", "v3"
vKA, vKB, vVA, vVB, vWQ, vWO, vX = "v4", "v5", "v6", "v7", "v8", "v9", "v10"
vSE, vSO, vSE0, vSO0, vSE1, vSO1 = "v11", "v12", "v13", "v14", "v15", "v244"
vT = "v245"; vB = "v248"; vXb = "v249"; vRW = "v250"; vRR = "v251"; vTS = "v255"
KR, VR, WR, SR, GR = 16, 96, 176, 208, 228
def vr(b, n=4): return f"v[{b}:{b+n-1}]"

def gen(ts=False, opt=None):
    opt = opt or {}
    xcd = opt.get("xcd", 1)
    A = Asm(); I = A.I
    def S(*lines):
        for l in lines: I(l)
    nts = [0]
    def stamp(name=""):
        if not ts: return
        k = nts[0]; nts[0] += 1
        assert k < 32
        S("s_memrealtime s[4:5]", "s_waitcnt lgkmcnt(0)", f"v_writelane_b32 {vTS}, s4, {k}")
    def transpose(b):
        for (x, y) in ((1,4),(2,8),(3,12),(6,9),(7,13),(11,14)):
            I(f"v_swap_b32 v{b+x}, v{b+y}")
    def tag4(b):
        for i in range(4): I(f"v_perm_b32 v{b+i}, v{b+i}, {vT}, s{8+i}")
    def chk4(b, tmp, first):
        I(f"v_perm_b32 {tmp}, v{b+1}, v{b}, s12")
        I(f"v_perm_b32 {tmp}, v{b+2}, {tmp}, s13")
        I(f"v_perm_b32 {tmp}, v{b+3}, {tmp}, s14")
        if first: I(f"v_cmp_ne_u32 s[6:7], {tmp}, {vT}")
        else: S(f"v_cmp_ne_u32 vcc, {tmp}, {vT}", "s_or_b64 s[6:7], s[6:7], vcc")
    def write_acc(vaddr, d):
        I(f"ds_write2_b64 {vaddr}, {vr(d,2)}, {vr(d+4,2)} offset0:0 offset1:1")
        I(f"ds_write2_b64 {vaddr}, {vr(d+8,2)}, {vr(d+12,2)} offset0:2 offset1:3")
        I(f"ds_write2_b64 {vaddr}, {vr(d+2,2)}, {vr(d+6,2)} offset0:64 offset1:65")
        I(f"ds_write2_b64 {vaddr}, {vr(d+10,2)}, {vr(d+14,2)} offset0:66 offset1:67")
    def barrier():
        S("s_waitcnt lgkmcnt(0)", "s_barrier")
    def sum4(D):
        I(f"v_pk_add_f32 {vr(D,2)}, {vr(D,2)}, {vr(D+4,2)}")
        I(f"v_pk_add_f32 {vr(D+2,2)}, {vr(D+2,2)}, {vr(D+6,2)}")
        I(f"v_pk_add_f32 {vr(D+8,2)}, {vr(D+8,2)}, {vr(D+12,2)}")
        I(f"v_pk_add_f32 {vr(D+10,2)}, {vr(D+10,2)}, {vr(D+14,2)}")
        I(f"v_pk_add_f32 {vr(D,2)}, {vr(D,2)}, {vr(D+8,2)}")
        I(f"v_pk_add_f32 {vr(D+2,2)}, {vr(D+2,2)}, {vr(D+10,2)}")
    def dpp(op, r, ctl): I(f"{op}_dpp v{r}, v{r}, v{r} {ctl} row_mask:0xf bank_mask:0xf")
    def afrags(xb, af):
        for u, (se, so) in enumerate(((vSE0, vSO0), (vSE1, vSO1))):
            I(f"v_perm_b32 v{af+4*u+0}, v{xb}, v{xb}, {se}")
            I(f"v_perm_b32 v{af+4*u+1}, v{xb}, v{xb}, {so}")
            I(f"v_perm_b32 v{af+4*u+2}, v{xb+1}, v{xb+1}, {se}")
            I(f"v_perm_b32 v{af+4*u+3}, v{xb+1}, v{xb+1}, {so}")
    def projmm(Wb, af, D, u):
        for r in range(4):
            c = "0" if u == 0 else vr(D+4*r)
            I(f"v_mfma_f32_16x16x32_bf16 {vr(D+4*r)}, {vr(af+4*u)}, {vr(Wb+16*u+4*r)}, {c}")
    def red_publish(D, vaddr, tag):
        for j in range(4): I(f"ds_read_b128 {vr(D+4*j)}, {vRR} offset:{L_RED+j*RED_STR}")
        I("s_waitcnt lgkmcnt(0)")
        sum4(D)
        a0, a1, a2, a3 = [f"v{D+j}" for j in range(4)]
        S(f"v_permlane32_swap_b32 {a0}, {a2}", f"v_permlane32_swap_b32 {a1}, {a3}",
          f"v_add_f32 {a0}, {a0}, {a2}", f"v_add_f32 {a1}, {a1}, {a3}",
          f"v_permlane16_swap_b32 {a0}, {a1}", f"v_add_f32 {a0}, {a0}, {a1}",
          f"v_mov_b32 {a1}, {a0}", f"v_permlane16_swap_b32 {a0}, {a1}",
          f"v_mov_b32 {a2}, {a0}", f"v_mov_b32 {a3}, {a1}",
          f"v_permlane32_swap_b32 {a0}, {a2}", f"v_permlane32_swap_b32 {a1}, {a3}")
        tag4(D)
        S("s_mov_b64 exec, 0xffff")
        I(f"buffer_store_dwordx4 {vr(D)}, {vaddr}, {sWS}, 0 offen sc1", tag)
        I("s_mov_b64 exec, -1")

    A.raw(HEADER.rstrip())
    A.raw(f"; @launch grid=(256,1,1) block=(512,1,1) lds={LDS_BYTES}")
    A.raw('.amdgcn_target "amdgcn-amd-amdhsa--gfx950"\n.text')
    A.raw(f".globl {NAME}_kernel\n.p2align 8\n.type {NAME}_kernel,@function\n{NAME}_kernel:")
    S("s_cmp_ge_u32 s2, 256", "s_cbranch_scc1 L_end")
    S("s_load_dwordx16 s[16:31], s[0:1], 0", "s_load_dwordx8 s[32:39], s[0:1], 64", "s_load_dwordx2 s[40:41], s[0:1], 96")
    if ts: I(f"v_mov_b32 {vTS}, 0")
    stamp("start")
    S("v_lshrrev_b32 v246, 6, v0", f"v_and_b32 {vLane}, 63, v0", f"v_readfirstlane_b32 {sW}, v246",
      f"v_lshrrev_b32 {vG}, 4, {vLane}", f"v_and_b32 {vN}, 15, {vLane}", f"v_lshlrev_b32 v247, 4, {vN}")
    S("s_and_b32 s10, s2, 3", "s_lshl_b32 s10, s10, 8", f"s_lshl_b32 s11, {sW}, 5", "s_add_u32 s10, s10, s11",
      "s_lshl_b32 s12, s10, 13", "s_lshr_b32 s13, s2, 2", "s_and_b32 s13, s13, 31", "s_lshl_b32 s13, s13, 8", "s_add_u32 s12, s12, s13")
    S(f"v_lshl_add_u32 v246, {vG}, 15, v247", f"v_add_u32 {vWQ}, s12, v246")
    S(f"v_bfe_u32 {vB}, {vLane}, 1, 2", f"v_bfe_u32 {vXb}, {vLane}, 3, 1", f"v_lshlrev_b32 v246, 11, {vB}",
      f"v_lshl_add_u32 v246, {vXb}, 5, v246", f"v_lshl_add_u32 v246, {vG}, 3, v246", "s_lshl_b32 s10, s10, 1", f"v_add_u32 {vX}, s10, v246")
    for u in range(2):
        for t in range(4): I(f"s_mov_b32 s{80+4*u+t}, {t*8192+u*131072}")
    S("s_mov_b32 s62, 8388608", "s_mov_b32 s63, 0x00020000", "s_mov_b32 s70, 8192", "s_mov_b32 s71, 0x00020000")
    if xcd:
        S("s_and_b32 s4, s2, 7", "s_lshl_b32 s4, s4, 1", "s_bfe_u32 s5, s2, 0x10003", "s_add_u32 s4, s4, s5", "s_lshr_b32 s5, s2, 4")
        S("s_lshr_b32 s14, s2, 6", "s_lshl_b32 s14, s14, 3", "s_and_b32 s15, s2, 7", "s_add_u32 s14, s14, s15", "s_bfe_u32 s15, s2, 0x30003")
    else:
        S("s_lshr_b32 s4, s2, 4", "s_and_b32 s5, s2, 15", "s_lshr_b32 s14, s2, 3", "s_and_b32 s15, s2, 7")
    S("s_cmp_ge_u32 s2, 128", "s_waitcnt lgkmcnt(0)")
    S("s_cselect_b32 s60, s32, s22", "s_cselect_b32 s61, s33, s23", "s_cselect_b32 s68, s26, s16", "s_cselect_b32 s69, s27, s17")
    I(f"buffer_load_dwordx2 v[232:233], {vX}, {sX}, 0 offen", "x")
    for u in range(2):
        for t in range(4):
            I(f"buffer_load_dwordx4 {vr(WR+16*u+4*t)}, {vWQ}, {sWQ}, s{80+4*u+t} offen nt", f"wq{u}")
    I("s_load_dword s42, s[40:41], 0")
    S("s_lshl_b32 s6, s4, 21", "s_lshl_b32 s7, s5, 17", "s_add_u32 s7, s7, s6", f"s_lshl_b32 s8, {sW}, 14", "s_add_u32 s7, s7, s8",
      "s_lshl_b32 s9, s5, 15", "s_add_u32 s9, s9, s6", f"s_lshl_b32 s8, {sW}, 12", "s_add_u32 s9, s9, s8", f"s_add_u32 s9, s9, {6144*256}")
    S(f"v_lshlrev_b32 v246, 8, {vN}", f"v_lshl_add_u32 v246, {vG}, 4, v246", f"v_add_u32 {vKA}, s7, v246", f"v_add_u32 {vKB}, s9, v246",
      f"v_lshl_add_u32 v246, {vG}, 10, v247", f"v_add_u32 {vVA}, s7, v246", f"v_add_u32 {vVB}, s9, v246")
    for (d, s) in ((52,28),(44,18),(48,20),(56,30)):
        S(f"s_mov_b32 s{d}, s{s}", f"s_mov_b32 s{d+1}, s{s+1}", f"s_mov_b32 s{d+2}, 33554432", f"s_mov_b32 s{d+3}, 0x00020000")
    for j in range(1, 4): I(f"s_mov_b32 s{95+j}, {4096*j}")
    if opt.get("b1", 1): I("s_barrier")
    def loadK(j):
        for st in range(4):
            if j == 0: I(f"buffer_load_dwordx4 {vr(KR+4*st)}, {vKB}, {sKB}, 0 offen offset:{64*st} nt", "K0")
            else:
                so = "0" if j == 1 else f"s{94+j}"
                I(f"buffer_load_dwordx4 {vr(KR+16*j+4*st)}, {vKA}, {sKA}, {so} offen offset:{64*st} nt", f"K{j}")
    def loadV(j):
        for t in range(4):
            if j == 0: I(f"buffer_load_dwordx4 {vr(VR+4*t)}, {vVB}, {sVB}, 0 offen offset:{256*t} nt", "V0")
            else:
                so = "0" if j == 1 else f"s{94+j}"
                I(f"buffer_load_dwordx4 {vr(VR+16*j+4*t)}, {vVA}, {sVA}, {so} offen offset:{256*t} nt", f"V{j}")
    WO = 48
    def loadWO(u):
        for t in range(4):
            I(f"buffer_load_dwordx4 {vr(WO+16*u+4*t)}, {vWO}, {sWO}, s{88+4*u+t} offen nt", f"wo{u}")
    npre = opt.get("npre", 1)
    for j in range(npre): loadK(j)
    S("s_cmp_ge_u32 s14, 16", "s_cselect_b32 s64, s34, s24", "s_cselect_b32 s65, s35, s25", "s_mov_b32 s66, 8388608", "s_mov_b32 s67, 0x00020000")
    S("s_and_b32 s6, s14, 15", "s_lshl_b32 s6, s6, 8", "s_add_u32 s6, s6, s11", "s_lshl_b32 s6, s6, 11", "s_lshl_b32 s7, s15, 8", "s_add_u32 s6, s6, s7")
    S(f"v_lshl_add_u32 v246, {vG}, 13, v247", f"v_add_u32 {vWO}, s6, v246")
    for u in range(2):
        for t in range(4): I(f"s_mov_b32 s{88+4*u+t}, {t*2048+u*32768}")
    S("s_mov_b32 s72, s40", "s_mov_b32 s73, s41", "s_mov_b32 s74, 268435456", "s_mov_b32 s75, 0x00020000")
    S("s_mov_b32 s76, s36", "s_mov_b32 s77, s37", "s_mov_b32 s78, 16384", "s_mov_b32 s79, 0x00020000")
    S(f"s_mov_b32 {sP}, s4", f"s_mov_b32 {sS}, s5", f"s_mov_b32 {sBK}, s14", f"s_mov_b32 {sCB}, s15")
    S(f"v_and_b32 v246, 1, {vLane}", "v_cmp_eq_u32 vcc, 0, v246", "v_mov_b32 v246, 0x01000c0c", "v_mov_b32 v247, 0x0c0c0100",
      f"v_cndmask_b32 {vSE}, v246, v247, vcc", "v_mov_b32 v246, 0x03020c0c", "v_mov_b32 v247, 0x0c0c0302", f"v_cndmask_b32 {vSO}, v246, v247, vcc",
      f"v_cmp_eq_u32 vcc, 0, {vXb}", "v_mov_b32 v246, 0x0c0c0c0c",
      f"v_cndmask_b32 {vSE0}, v246, {vSE}, vcc", f"v_cndmask_b32 {vSO0}, v246, {vSO}, vcc",
      f"v_cndmask_b32 {vSE1}, {vSE}, v246, vcc", f"v_cndmask_b32 {vSO1}, {vSO}, v246, vcc")
    for i in range(4): I(f"s_mov_b32 s{8+i}, {0x07060500+i:#x}")
    S("s_mov_b32 s12, 0x0c0c0400", "s_mov_b32 s13, 0x0c040100", "s_mov_b32 s14, 0x04020100", f"s_mov_b32 {sC}, {f32(SCALE)}")
    S(f"v_lshrrev_b32 v246, 1, {vG}", f"v_lshl_add_u32 v246, {sW}, 1, v246", f"v_mul_u32_u24 v246, {RED_STR}, v246",
      f"v_and_b32 v247, 1, {vG}", "v_lshl_add_u32 v246, v247, 10, v246", f"v_lshl_add_u32 {vRW}, {vN}, 5, v246",
      f"v_mul_u32_u24 v246, {4*RED_STR}, {vG}", f"v_lshl_add_u32 v247, {sW}, 4, {vN}", f"v_lshl_add_u32 {vRR}, v247, 4, v246")
    S("s_lshr_b32 s4, s2, 2", "s_and_b32 s4, s4, 31", "s_lshl_b32 s4, s4, 12", "s_lshr_b32 s5, s2, 7", "s_lshl_b32 s5, s5, 2",
      "s_and_b32 s6, s2, 3", "s_add_u32 s5, s5, s6", "s_lshl_b32 s5, s5, 9", "s_add_u32 s4, s4, s5", f"s_add_u32 s4, s4, {WS_QP}")
    S(f"s_lshr_b32 s5, {sW}, 1", "s_lshl_b32 s5, s5, 19", "s_add_u32 s4, s4, s5", f"s_and_b32 s5, {sW}, 1", "s_lshl_b32 s5, s5, 8", "s_add_u32 s4, s4, s5",
      f"v_lshlrev_b32 v246, 4, {vN}", "v_add_u32 v252, s4, v246")
    S(f"s_and_b32 s5, {sP}, 3", "s_lshl_b32 s5, s5, 3", f"s_add_u32 s5, s5, {sW}", "s_lshl_b32 s5, s5, 12",
      f"s_lshr_b32 s4, {sP}, 2", "s_lshl_b32 s4, s4, 19", "s_add_u32 s5, s5, s4", f"s_add_u32 s5, s5, {WS_QP}")
    S(f"v_lshlrev_b32 v246, 4, {vLane}", "v_add_u32 v253, s5, v246")
    S("s_waitcnt lgkmcnt(0)", f"s_add_u32 {sEP1}, s42, 1", f"s_mul_i32 {sTAG}, {sEP1}, 0x9e3779b1",
      f"s_lshr_b32 s4, {sTAG}, 15", f"s_xor_b32 {sTAG}, {sTAG}, s4", f"s_mul_i32 {sTAG}, {sTAG}, 0x85ebca6b",
      f"s_lshr_b32 s4, {sTAG}, 13", f"s_xor_b32 {sTAG}, {sTAG}, s4", f"v_mov_b32 {vT}, {sTAG}")

    A.wait_vm("x")
    afrags(232, 224)
    for u in range(2):
        A.wait_vm(f"wq{u}"); transpose(WR+16*u); projmm(WR, 224, SR, u)
    stamp("wq arrived")
    write_acc(vRW, SR)
    npre2 = opt.get("npre2", npre)
    for j in range(npre, npre2): loadK(j)
    barrier()
    red_publish(SR, "v252", "qst")
    I("s_barrier")
    stamp("q published")
    for j in range(npre2, 5): loadK(j)
    def gatherQ(tag):
        for i in range(4): I(f"buffer_load_dwordx4 {vr(GR+4*i)}, v253, {sWS}, 0 offen offset:{1024*i} sc1", tag)
    gatherQ("G")
    I("s_barrier")
    nv1 = opt.get("nv1", 2)
    for j in range(nv1): loadV(j)
    S(f"v_lshrrev_b32 v246, 5, {vLane}", f"v_mul_u32_u24 v246, {Q_BS}, v246", f"v_and_b32 v247, 31, {vLane}", "v_lshl_add_u32 v246, v247, 3, v246",
      f"s_mul_i32 s4, {sW}, {Q_HS}", "v_add_u32 v252, s4, v246")
    S(f"v_lshrrev_b32 v247, 1, {vN}", f"v_mul_u32_u24 v247, {Q_HS}, v247", f"v_lshl_add_u32 v254, {vG}, 4, v247")
    I("s_mov_b32 s15, 0")
    A.wait_vm("G")
    stamp("G arrived")
    A.label("L_qchk")
    for i in range(4): chk4(GR+4*i, "v246", i == 0)
    S("s_cmp_eq_u64 s[6:7], 0", "s_cbranch_scc1 L_qok", "s_add_u32 s15, s15, 1", "s_cmp_gt_u32 s15, 20000", "s_cbranch_scc1 L_qok")
    nvm = len(A.vm)
    gatherQ("G2")
    S("s_waitcnt vmcnt(0)", "s_branch L_qchk")
    del A.vm[nvm:]
    A.label("L_qok")
    stamp("G ok")
    for j in range(0, 4, 2):
        I(f"v_pk_add_f32 {vr(GR+j,2)}, {vr(GR+j,2)}, {vr(GR+4+j,2)}")
        I(f"v_pk_add_f32 {vr(GR+8+j,2)}, {vr(GR+8+j,2)}, {vr(GR+12+j,2)}")
    for j in range(4): I(f"v_permlane32_swap_b32 v{GR+j}, v{GR+8+j}")
    for j in range(0, 4, 2): I(f"v_pk_add_f32 {vr(GR+j,2)}, {vr(GR+j,2)}, {vr(GR+8+j,2)}")
    S(f"v_cvt_pk_bf16_f32 v{GR}, v{GR}, v{GR+1}", f"v_cvt_pk_bf16_f32 v{GR+1}, v{GR+2}, v{GR+3}")
    I(f"ds_write_b64 v252, {vr(GR,2)} offset:{L_Q}")
    barrier()
    QA, QB = WR, WR+16
    for st in range(4): I(f"ds_read_b128 {vr(QB+4*st)}, v254 offset:{L_Q+Q_BS+64*st}")
    for st in range(4): I(f"ds_read_b128 {vr(QA+4*st)}, v254 offset:{L_Q+64*st}")
    S(f"v_lshrrev_b32 v246, 5, {vLane}", f"v_lshl_add_u32 v246, v246, 4, {vN}", "v_lshlrev_b32 v246, 5, v246",
      f"v_lshl_add_u32 v253, {sW}, 2, v246", f"v_lshlrev_b32 v252, 5, {vN}")
    I("s_waitcnt lgkmcnt(0)")
    for st in range(4):
        for j in range(5):
            q = QB if j == 0 else QA
            c = "0" if st == 0 else vr(SR+4*j)
            I(f"v_mfma_f32_16x16x32_bf16 {vr(SR+4*j)}, {vr(KR+16*j+4*st)}, {vr(q+4*st)}, {c}")
    stamp("QK done")
    TM = 80
    mA, mB = f"v{TM}", f"v{TM+1}"
    S(f"v_max3_f32 {mB}, v{SR}, v{SR+1}, v{SR+2}", f"v_max_f32 {mB}, {mB}, v{SR+3}", f"v_max3_f32 {mA}, v{SR+4}, v{SR+5}, v{SR+6}")
    for k in range(SR+7, SR+19, 2): I(f"v_max3_f32 {mA}, {mA}, v{k}, v{k+1}")
    I(f"v_max_f32 {mA}, {mA}, v{SR+19}")
    def xreduce(a, b, op, t):
        S(f"v_permlane32_swap_b32 {a}, {b}", f"{op} {a}, {a}, {b}", f"v_mov_b32 {t}, {a}", f"v_permlane16_swap_b32 {a}, {t}", f"{op} {a}, {a}, {t}")
    xreduce(mA, mB, "v_max_f32", f"v{TM+2}")
    I(f"ds_write_b32 v253, {mA} offset:{L_MX}")
    barrier()
    R = WR
    for k in range(4): I(f"ds_read_b128 {vr(R+4*k)}, v252 offset:{L_MX+(k>>1)*512+(k&1)*16}")
    I("s_waitcnt lgkmcnt(0)")
    for (m, b) in ((mA, R), (mB, R+8)):
        S(f"v_max3_f32 {m}, v{b}, v{b+1}, v{b+2}", f"v_max3_f32 {m}, {m}, v{b+3}, v{b+4}", f"v_max3_f32 {m}, {m}, v{b+5}, v{b+6}", f"v_max_f32 {m}, {m}, v{b+7}")
    S(f"v_mul_f32 {mA}, {sC}, {mA}", f"v_mul_f32 {mB}, {sC}, {mB}")
    for k in range(20):
        I(f"v_fma_f32 v{SR+k}, v{SR+k}, {sC}, -{mB if k < 4 else mA}")
    for k in range(20): I(f"v_exp_f32 v{SR+k}, v{SR+k}")
    lA, lB = f"v{TM+4}", f"v{TM+5}"
    S(f"v_add_f32 {lB}, v{SR}, v{SR+1}", f"v_add_f32 {lB}, {lB}, v{SR+2}", f"v_add_f32 {lB}, {lB}, v{SR+3}", f"v_add_f32 {lA}, v{SR+4}, v{SR+5}")
    for k in range(6, 20): I(f"v_add_f32 {lA}, {lA}, v{SR+k}")
    xreduce(lA, lB, "v_add_f32", f"v{TM+2}")
    I(f"ds_write_b32 v253, {lA} offset:{L_LS}")
    S(f"s_lshl_b32 s4, {sW}, 1", f"v_readlane_b32 s42, {mA}, s4", f"v_readlane_b32 s43, {mB}, s4")
    for j in range(5):
        b = SR+4*j
        S(f"v_cvt_pk_bf16_f32 v{TM+6}, v{b}, v{b+1}", f"v_cvt_pk_bf16_f32 v{TM+7}, v{b+2}, v{b+3}",
          f"v_perm_b32 v{b}, v{TM+6}, v{TM+6}, {vSE}", f"v_perm_b32 v{b+1}, v{TM+6}, v{TM+6}, {vSO}",
          f"v_perm_b32 v{b+2}, v{TM+7}, v{TM+7}, {vSE}", f"v_perm_b32 v{b+3}, v{TM+7}, v{TM+7}, {vSO}")
    stamp("softmax done")
    nv2 = opt.get("nv2", 3)
    for j in range(nv1, nv2): loadV(j)
    OA, OB = 16, 32
    def pv(j, O, first):
        A.wait_vm(f"V{j}")
        transpose(VR+16*j)
        for r in range(4):
            c = "0" if first else vr(O+4*r)
            I(f"v_mfma_f32_16x16x32_bf16 {vr(O+4*r)}, {vr(SR+4*j)}, {vr(VR+16*j+4*r)}, {c}")
    vOW, vOR, vOS, vLSs, vLSr = [f"v{TM+8+i}" for i in range(5)]
    S(f"s_mul_i32 s4, {sW}, {O_STR}", f"v_lshlrev_b32 v246, 10, {vG}", f"v_lshl_add_u32 v246, {vN}, 5, v246", f"v_add_u32 {vOW}, s4, v246",
      f"v_lshrrev_b32 v246, 5, {vLane}", f"v_mul_u32_u24 v246, {4*O_STR}, v246", f"v_and_b32 v247, 31, {vLane}", f"v_lshl_add_u32 v247, {sW}, 5, v247", f"v_lshl_add_u32 {vOR}, v247, 4, v246")
    S(f"s_and_b32 s4, {sP}, 3", "s_lshl_b32 s4, s4, 3", f"s_add_u32 s4, s4, {sW}", f"s_lshr_b32 s6, {sP}, 2", "s_lshl_b32 s6, s6, 19",
      "s_lshl_b32 s5, s4, 13", "s_add_u32 s5, s5, s6", f"s_lshl_b32 s7, {sS}, 7", "s_add_u32 s5, s5, s7", f"s_add_u32 s5, s5, {WS_OP}")
    S("v_bfe_u32 v246, v0, 3, 2", "v_lshlrev_b32 v246, 11, v246", "v_and_b32 v247, 7, v0", "v_lshl_add_u32 v246, v247, 4, v246", f"v_add_u32 {vOS}, s5, v246")
    S("s_lshl_b32 s5, s4, 7", "s_add_u32 s5, s5, s6", f"s_lshl_b32 s7, {sS}, 3", "s_add_u32 s5, s5, s7", f"s_add_u32 s5, s5, {WS_LSE}",
      f"v_mov_b32 {vLSs}, s5", f"s_lshl_b32 s4, {sW}, 6", f"v_mov_b32 {vLSr}, s4", f"s_mov_b32 s20, {4*8*8192}")
    def publishO(br, O, Lb):
        I(f"v_add_u32 v246, {Lb}, {vOW}")
        write_acc("v246", O)
        I(f"v_add_u32 v247, {Lb}, {vOR}")
        barrier()
        for j in range(4): I(f"ds_read_b128 {vr(R+4*j)}, v247 offset:{j*O_STR}")
        for k in range(2): I(f"ds_read_b128 {vr(R+16+4*k)}, {vLSr} offset:{L_LS+br*512+16*k}")
        I("s_waitcnt lgkmcnt(0)")
        I(f"v_pk_add_f32 {vr(R+16,2)}, {vr(R+16,2)}, {vr(R+18,2)}")
        I(f"v_pk_add_f32 {vr(R+20,2)}, {vr(R+20,2)}, {vr(R+22,2)}")
        I(f"v_pk_add_f32 {vr(R+16,2)}, {vr(R+16,2)}, {vr(R+20,2)}")
        I(f"v_add_f32 v{R+16}, v{R+16}, v{R+17}")
        S(f"v_rcp_f32 v{R+18}, v{R+16}", f"v_log_f32 v{R+20}, v{R+16}")
        sum4(R)
        S(f"v_add_f32 v{R+20}, s{42+br}, v{R+20}", f"v_mov_b32 v{R+21}, {vT}")
        S(f"v_permlane32_swap_b32 v{R}, v{R+1}", f"v_permlane32_swap_b32 v{R+2}, v{R+3}",
          f"v_add_f32 v{R}, v{R}, v{R+1}", f"v_add_f32 v{R+2}, v{R+2}, v{R+3}",
          f"v_mul_f32 v{R}, v{R}, v{R+18}", f"v_mul_f32 v{R+2}, v{R+2}, v{R+18}",
          f"v_mov_b32 v{R+1}, v{R}", f"v_mov_b32 v{R+3}, v{R+2}",
          f"v_permlane32_swap_b32 v{R}, v{R+1}", f"v_permlane32_swap_b32 v{R+2}, v{R+3}")
        tag4(R)
        S("s_mov_b32 exec_lo, -1", "s_mov_b32 exec_hi, 0")
        I(f"buffer_store_dwordx4 {vr(R)}, {vOS}, {sWS}, {'0' if br == 0 else 's20'} offen sc1", f"ost{br}")
        I("s_mov_b64 exec, 1")
        I(f"buffer_store_dwordx2 {vr(R+20,2)}, {vLSs}, {sWS}, {'0' if br == 0 else 's96'} offen sc1", f"ost{br}")
        I("s_mov_b64 exec, -1")
    pv(0, OB, True)
    publishO(1, OB, L_OB)
    if nv2 < 5: I("s_barrier")
    stamp("B published")
    for j in range(nv2, 5): loadV(j)
    wosplit = opt.get("wosplit", 0)
    wolate = opt.get("wolate", 0)
    if wolate == 0:
        for u in range(wosplit): loadWO(u)
    S(f"s_lshr_b32 s5, {sBK}, 2", f"s_lshl_b32 s4, {sBK}, 1", f"s_lshr_b32 s6, {sW}, 2", "s_add_u32 s4, s4, s6", "s_and_b32 s4, s4, 7",
      "s_lshl_b32 s5, s5, 3", "s_add_u32 s5, s5, s4",
      "s_lshl_b32 s6, s5, 7", f"s_add_u32 s6, s6, {WS_LSE}",
      "s_lshl_b32 s5, s5, 2", f"s_and_b32 s7, {sW}, 3", "s_add_u32 s5, s5, s7", "s_lshl_b32 s5, s5, 11", f"s_add_u32 s5, s5, {WS_OP}")
    S(f"v_lshlrev_b32 v247, 19, {vG}", f"v_lshl_add_u32 v246, {vN}, 4, v247", "v_add_u32 v252, s5, v246",
      f"v_lshl_add_u32 v246, {vN}, 3, v247", "v_add_u32 v253, s6, v246")
    S(f"v_lshlrev_b32 v254, 6, {vB}", f"v_lshl_add_u32 v254, {vXb}, 4, v254", f"v_lshl_add_u32 v254, {vG}, 2, v254")
    vFS, vFG = vKA, vKB
    S(f"s_lshr_b32 s4, {sBK}, 4", "s_lshl_b32 s4, s4, 3", f"s_add_u32 s4, s4, {sCB}", "s_lshl_b32 s4, s4, 13", f"s_add_u32 s4, s4, {WS_FP}",
      f"s_and_b32 s5, {sBK}, 15", "s_lshl_b32 s6, s5, 7", "s_add_u32 s6, s6, s4")
    S(f"s_lshr_b32 s7, {sW}, 1", "s_lshl_b32 s7, s7, 19", "s_add_u32 s6, s6, s7", f"s_and_b32 s7, {sW}, 1", "s_lshl_b32 s7, s7, 12", "s_add_u32 s6, s6, s7",
      f"v_lshrrev_b32 v246, 3, {vN}", "v_lshlrev_b32 v246, 11, v246", f"v_and_b32 v247, 7, {vN}", "v_lshl_add_u32 v246, v247, 4, v246", f"v_add_u32 {vFS}, s6, v246")
    S("s_lshr_b32 s6, s5, 2", "s_lshl_b32 s6, s6, 19", "s_add_u32 s6, s6, s4", "s_and_b32 s5, s5, 3", "s_lshl_b32 s5, s5, 11", "s_add_u32 s6, s6, s5")
    S(f"v_lshlrev_b32 v246, 4, {vLane}", f"v_add_u32 {vFG}, s6, v246")
    for j in range(1, 5):
        pv(j, OA, j == 1)
        if wolate == j:
            for u in range(wosplit): loadWO(u)
    stamp("PV done")
    publishO(0, OA, L_OA)
    I("s_barrier")
    stamp("A published")
    for u in range(wosplit, 2): loadWO(u)
    if wosplit < 2: I("s_barrier")
    DG, LG, TT = 96, 128, 144
    def gatherL(tag):
        I(f"buffer_load_dwordx2 {vr(LG,2)}, v253, {sWS}, 0 offen sc1", tag)
    def gatherO(tag):
        for i in range(8): I(f"buffer_load_dwordx4 {vr(DG+4*i)}, v252, {sWS}, 0 offen offset:{256*i} sc1", tag)
    gatherL("GO"); gatherO("GO")
    A.wait_vm("wo0"); transpose(WO)
    A.wait_vm("wo1"); transpose(WO+16)
    stamp("wo arrived")
    I("s_mov_b32 s15, 0")
    A.wait_vm("GO")
    stamp("GO arrived")
    A.label("L_ochk")
    for i in range(8): chk4(DG+4*i, "v246", i == 0)
    S(f"v_cmp_ne_u32 vcc, v{LG+1}, {vT}", "s_or_b64 s[6:7], s[6:7], vcc", "s_cmp_eq_u64 s[6:7], 0", "s_cbranch_scc1 L_ook")
    nvm = len(A.vm)
    A.label("L_opoll")
    S("s_add_u32 s15, s15, 1", "s_cmp_gt_u32 s15, 20000", "s_cbranch_scc1 L_ook")
    gatherL("GO2")
    S("s_waitcnt vmcnt(0)", f"v_cmp_ne_u32 vcc, v{LG+1}, {vT}", "s_cbranch_vccnz L_opoll")
    gatherO("GO2")
    S("s_waitcnt vmcnt(0)", "s_branch L_ochk")
    del A.vm[nvm:]
    A.label("L_ook")
    stamp("GO ok")
    I(f"v_mov_b32 v{TT}, v{LG}")
    for k in (8, 4, 2, 1): dpp("v_max_f32", TT, f"row_ror:{k}")
    S(f"v_sub_f32 v{LG}, v{LG}, v{TT}", f"v_exp_f32 v{LG}, v{LG}", f"v_mov_b32 v{TT+1}, v{LG}")
    for k in (8, 4, 2, 1): dpp("v_add_f32", TT+1, f"row_ror:{k}")
    S(f"v_rcp_f32 v{TT+1}, v{TT+1}", f"v_mul_f32 v{LG}, v{LG}, v{TT+1}")
    Wt = LG+2
    for i in range(8):
        I(f"v_mov_b32_dpp v{Wt+i}, v{LG} row_newbcast:{2*i} row_mask:0xf bank_mask:0x3")
        I(f"v_mov_b32_dpp v{Wt+i}, v{LG} row_newbcast:{2*i+1} row_mask:0xf bank_mask:0xc")
    AC = TT+4
    for j in range(4): I(f"v_mul_f32 v{AC+j}, v{Wt}, v{DG+j}")
    for i in range(1, 8):
        for j in range(4): I(f"v_fmac_f32 v{AC+j}, v{Wt+i}, v{DG+4*i+j}")
    for j in range(4): dpp("v_add_f32", AC+j, "row_ror:8")
    S(f"v_cvt_pk_bf16_f32 v{TT+10}, v{AC}, v{AC+1}", f"v_cvt_pk_bf16_f32 v{TT+11}, v{AC+2}, v{AC+3}",
      f"ds_bpermute_b32 v{TT+8}, v254, v{TT+10}", f"ds_bpermute_b32 v{TT+9}, v254, v{TT+11}", "s_waitcnt lgkmcnt(0)")
    afrags(TT+8, 224)
    for u in range(2): projmm(WO, 224, SR, u)
    write_acc(vRW, SR)
    barrier()
    red_publish(SR, vFS, "fst")
    stamp("F published")
    S(f"s_cmp_lg_u32 {sW}, 0", "s_cbranch_scc1 L_fin")
    S(f"s_and_b32 s4, {sBK}, 15", "s_lshr_b32 s5, s4, 2", "s_lshl_b32 s5, s5, 12", "s_and_b32 s4, s4, 3", "s_lshl_b32 s4, s4, 6", "s_add_u32 s5, s5, s4",
      f"s_lshr_b32 s4, {sBK}, 4", "s_lshl_b32 s4, s4, 11", "s_add_u32 s5, s5, s4", f"s_lshl_b32 s4, {sCB}, 8", "s_add_u32 s5, s5, s4")
    S(f"v_and_b32 v252, 7, {vLane}", "v_lshlrev_b32 v252, 3, v252", f"v_and_b32 v247, 1, {vG}", "v_lshl_add_u32 v252, v247, 2, v252",
      f"v_lshrrev_b32 v247, 1, {vG}", "v_lshl_add_u32 v252, v247, 1, v252", "v_add_u32 v252, s5, v252")
    I("s_mov_b32 s15, 0")
    A.label("L_fl")
    I(f"buffer_load_dwordx4 {vr(DG)}, {vFG}, {sWS}, 0 offen sc1")
    I(f"buffer_load_dwordx4 {vr(DG+4)}, {vFG}, {sWS}, 0 offen offset:1024 sc1")
    I("s_waitcnt vmcnt(0)")
    chk4(DG, "v246", True); chk4(DG+4, "v246", False)
    S("s_cmp_eq_u64 s[6:7], 0", "s_cbranch_scc1 L_fok", "s_add_u32 s15, s15, 1", "s_cmp_gt_u32 s15, 20000", "s_cbranch_scc0 L_fl")
    A.label("L_fok")
    stamp("F ok")
    S(f"v_pk_add_f32 {vr(DG,2)}, {vr(DG,2)}, {vr(DG+4,2)}", f"v_pk_add_f32 {vr(DG+2,2)}, {vr(DG+2,2)}, {vr(DG+6,2)}",
      f"v_permlane32_swap_b32 v{DG}, v{DG+1}", f"v_permlane32_swap_b32 v{DG+2}, v{DG+3}",
      f"v_add_f32 v{DG}, v{DG}, v{DG+1}", f"v_add_f32 v{DG+2}, v{DG+2}, v{DG+3}",
      f"v_permlane16_swap_b32 v{DG}, v{DG+2}", f"v_add_f32 v{DG}, v{DG}, v{DG+2}")
    dpp("v_add_f32", DG, "row_ror:8")
    I(f"v_cvt_pk_bf16_f32 v{DG}, v{DG}, v{DG}")
    S("s_mov_b32 exec_lo, 0x00ff00ff", "s_mov_b32 exec_hi, 0x00ff00ff")
    I(f"buffer_store_short v{DG}, v252, {sOUT}, 0 offen")
    S("s_mov_b64 exec, -1", "s_cmp_lg_u32 s2, 0", "s_cbranch_scc1 L_fin")
    S("v_mov_b32 v246, 0", f"v_mov_b32 v247, {sEP1}", "s_mov_b64 exec, 1")
    I(f"buffer_store_dword v247, v246, {sWS}, 0 offen")
    I("s_mov_b64 exec, -1")
    A.label("L_fin")
    if ts and opt.get("dbg"):
        nts[0] = 14; stamp("end")
        S(f"v_readlane_b32 s4, {vTS}, 0", "s_not_b32 s4, s4", f"v_writelane_b32 {vTS}, s4, 15")
        S("s_mov_b32 s20, s38", "s_mov_b32 s21, s39", "s_mov_b32 s22, 256", "s_mov_b32 s23, 0x00020000")
        S(f"v_lshlrev_b32 v246, 2, {vLane}", "s_mov_b64 exec, 0xffff")
        I(f"buffer_atomic_umax {vTS}, v246, s[20:23], 0 offen")
    elif ts:
        nts[0] = 31; stamp("end")
        S("s_lshl_b32 s4, s2, 3", f"s_add_u32 s4, s4, {sW}", "s_lshl_b32 s4, s4, 7", f"s_add_u32 s4, s4, {WS_TS}",
          f"v_lshlrev_b32 v246, 2, {vLane}", "v_add_u32 v246, s4, v246", "s_mov_b32 exec_lo, -1", "s_mov_b32 exec_hi, 0")
        I(f"buffer_store_dword {vTS}, v246, {sWS}, 0 offen")
    A.raw("L_end:")
    I("s_endpgm")
    A.raw(f""".section .rodata,"a"
.p2align 6
.amdhsa_kernel {NAME}_kernel
  .amdhsa_next_free_vgpr 256
  .amdhsa_next_free_sgpr 102
  .amdhsa_accum_offset 256
  .amdhsa_group_segment_fixed_size 0
  .amdhsa_kernarg_size 104
  .amdhsa_user_sgpr_count 2
  .amdhsa_user_sgpr_kernarg_segment_ptr 1
  .amdhsa_system_sgpr_workgroup_id_x 1
.end_amdhsa_kernel""")
    return A.text()

if __name__ == "__main__":
    ts = "--ts" in sys.argv
    out = sys.argv[1]
    opt = {}
    for a in sys.argv[2:]:
        if "=" in a:
            k, v = a.split("="); opt[k] = int(v)
    open(out, "w").write(gen(ts=ts, opt=opt))
```

```python
import sys, struct
sys.path.insert(0, "dev")
from asmlib import Asm
NAME = "concat_heads__gqa_block_cached__sliding_block_cached__decode"
HEADER = open("cdna_kernels/" + NAME + ".s.ref").read().split("; Override launch geometry")[0]

WS_OP = 0x200000; WS_QP = 0x400000; WS_LSE = 0x700000; WS_FP = 0xA00000; WS_OC = 0xD00000; WS_XT = 0x1000; WS_TS = 0x1000000
QP_STR = 0x5000; LSE_STR = 0x2100; FP_STR = 0x2800; OC_STR = 0x2200; XT_STR = 0x2100
L_RED = 0; RED_STR = 2064
L_Q = 33024; Q_HS = 272; Q_BS = 2176
L_MX = 37376; L_LS = 38400
L_OB = 39424; L_OA = 72448; O_STR = 4128
LDS_BYTES = 105472
SCALE = (128 ** -0.5) * 1.4426950408889634
def f32(x): return "0x%08x" % struct.unpack("<I", struct.pack("<f", x))[0]

sKA, sVA, sKB, sVB, sWQ, sWO, sX, sWS, sOUT = [f"s[{44+4*i}:{47+4*i}]" for i in range(9)]
sW = "s3"
sP, sS, sBK, sCB = "s16", "s17", "s18", "s19"
sTAG = "s99"; sEP1 = "s100"; sC = "s101"
vLane, vG, vN = "v1", "v2", "v3"
vKA, vKB, vVA, vVB, vWQ, vWO, vX = "v4", "v5", "v6", "v7", "v8", "v9", "v10"
vSE, vSO, vSE0, vSO0, vSE1, vSO1 = "v11", "v12", "v13", "v14", "v15", "v244"
vT = "v245"; vB = "v248"; vXb = "v249"; vRW = "v250"; vRR = "v251"; vTS = "v255"
KR, VR, WR, SR, GR = 16, 96, 176, 208, 228
def vr(b, n=4): return f"v[{b}:{b+n-1}]"

def gen(ts=False, opt=None):
    opt = opt or {}
    xcd = opt.get("xcd", 1)
    A = Asm(); I0 = A.I
    def I(text, tag=None):
        if opt.get("noq") and tag == "qst" and opt["noq"] & 1: return I0("s_nop 0")
        if opt.get("noq") and tag in ("G", "G2") and "x4" in text and opt["noq"] & 2: return I0("s_nop 0")
        return I0(text, tag)
    def S(*lines):
        for l in lines: I(l)
    nts = [0]
    def stamp(name=""):
        if not ts: return
        k = nts[0]; nts[0] += 1
        assert k < 32
        S("s_memrealtime s[4:5]", "s_waitcnt lgkmcnt(0)", f"v_writelane_b32 {vTS}, s4, {k}")
    def transpose(b):
        for (x, y) in ((1,4),(2,8),(3,12),(6,9),(7,13),(11,14)):
            I(f"v_swap_b32 v{b+x}, v{b+y}")
    def tag4(b):
        for i in range(4): I(f"v_perm_b32 v{b+i}, v{b+i}, {vT}, s{8+i}")
    def chk4(b, tmp, first):
        I(f"v_perm_b32 {tmp}, v{b+1}, v{b}, s12")
        I(f"v_perm_b32 {tmp}, v{b+2}, {tmp}, s13")
        I(f"v_perm_b32 {tmp}, v{b+3}, {tmp}, s14")
        if first: I(f"v_cmp_ne_u32 s[6:7], {tmp}, {vT}")
        else: S(f"v_cmp_ne_u32 vcc, {tmp}, {vT}", "s_or_b64 s[6:7], s[6:7], vcc")
    def write_acc(vaddr, d):
        I(f"ds_write2_b64 {vaddr}, {vr(d,2)}, {vr(d+4,2)} offset0:0 offset1:1")
        I(f"ds_write2_b64 {vaddr}, {vr(d+8,2)}, {vr(d+12,2)} offset0:2 offset1:3")
        I(f"ds_write2_b64 {vaddr}, {vr(d+2,2)}, {vr(d+6,2)} offset0:64 offset1:65")
        I(f"ds_write2_b64 {vaddr}, {vr(d+10,2)}, {vr(d+14,2)} offset0:66 offset1:67")
    def barrier():
        S("s_waitcnt lgkmcnt(0)", "s_barrier")
    def sum4(D):
        I(f"v_pk_add_f32 {vr(D,2)}, {vr(D,2)}, {vr(D+4,2)}")
        I(f"v_pk_add_f32 {vr(D+2,2)}, {vr(D+2,2)}, {vr(D+6,2)}")
        I(f"v_pk_add_f32 {vr(D+8,2)}, {vr(D+8,2)}, {vr(D+12,2)}")
        I(f"v_pk_add_f32 {vr(D+10,2)}, {vr(D+10,2)}, {vr(D+14,2)}")
        I(f"v_pk_add_f32 {vr(D,2)}, {vr(D,2)}, {vr(D+8,2)}")
        I(f"v_pk_add_f32 {vr(D+2,2)}, {vr(D+2,2)}, {vr(D+10,2)}")
    def dpp(op, r, ctl): I(f"{op}_dpp v{r}, v{r}, v{r} {ctl} row_mask:0xf bank_mask:0xf")
    def afrags(xb, af):
        for u, (se, so) in enumerate(((vSE0, vSO0), (vSE1, vSO1))):
            I(f"v_perm_b32 v{af+4*u+0}, v{xb}, v{xb}, {se}")
            I(f"v_perm_b32 v{af+4*u+1}, v{xb}, v{xb}, {so}")
            I(f"v_perm_b32 v{af+4*u+2}, v{xb+1}, v{xb+1}, {se}")
            I(f"v_perm_b32 v{af+4*u+3}, v{xb+1}, v{xb+1}, {so}")
    def projmm(Wb, af, D, u):
        for r in range(4):
            c = "0" if u == 0 else vr(D+4*r)
            I(f"v_mfma_f32_16x16x32_bf16 {vr(D+4*r)}, {vr(af+4*u)}, {vr(Wb+16*u+4*r)}, {c}")
    nlab = [0]
    def lstore(stores):
        n = nlab[0]; nlab[0] += 1
        S("s_cmp_lg_u32 s22, 0", f"s_cbranch_scc1 L_sl{n}")
        for pre, txt, tag in stores:
            S(*pre); I(txt + " sc1", tag)
        I(f"s_branch L_sd{n}")
        A.label(f"L_sl{n}")
        for pre, txt, tag in stores:
            S(*pre); I(txt, tag); A.vm.pop()
        A.label(f"L_sd{n}")
        I("s_mov_b64 exec, -1")
    def xrow(D):
        a0, a1, a2, a3 = [f"v{D+j}" for j in range(4)]
        S(f"v_permlane32_swap_b32 {a0}, {a2}", f"v_permlane32_swap_b32 {a1}, {a3}",
          f"v_add_f32 {a0}, {a0}, {a2}", f"v_add_f32 {a1}, {a1}, {a3}",
          f"v_permlane16_swap_b32 {a0}, {a1}", f"v_add_f32 {a0}, {a0}, {a1}",
          f"v_mov_b32 {a1}, {a0}", f"v_permlane16_swap_b32 {a0}, {a1}",
          f"v_mov_b32 {a2}, {a0}", f"v_mov_b32 {a3}, {a1}",
          f"v_permlane32_swap_b32 {a0}, {a2}", f"v_permlane32_swap_b32 {a1}, {a3}")
    def red_publish(D, vaddr, tag, local=False):
        for j in range(4): I(f"ds_read_b128 {vr(D+4*j)}, {vRR} offset:{L_RED+j*RED_STR}")
        I("s_waitcnt lgkmcnt(0)")
        sum4(D)
        xrow(D)
        tag4(D)
        if local:
            lstore([(["s_mov_b64 exec, 0xffff"], f"buffer_store_dwordx4 {vr(D)}, {vaddr}, {sWS}, 0 offen", tag)])
        else:
            S("s_mov_b64 exec, 0xffff")
            I(f"buffer_store_dwordx4 {vr(D)}, {vaddr}, {sWS}, 0 offen sc1", tag)
            I("s_mov_b64 exec, -1")

    A.raw(HEADER.rstrip())
    A.raw(f"; @launch grid=(256,1,1) block=(512,1,1) lds={LDS_BYTES}")
    A.raw('.amdgcn_target "amdgcn-amd-amdhsa--gfx950"\n.text')
    A.raw(f".globl {NAME}_kernel\n.p2align 8\n.type {NAME}_kernel,@function\n{NAME}_kernel:")
    S("s_cmp_ge_u32 s2, 256", "s_cbranch_scc1 L_end")
    S("s_load_dwordx16 s[16:31], s[0:1], 0", "s_load_dwordx8 s[32:39], s[0:1], 64", "s_load_dwordx2 s[40:41], s[0:1], 96")
    if ts: I(f"v_mov_b32 {vTS}, 0")
    stamp("start")
    S("v_lshrrev_b32 v246, 6, v0", f"v_and_b32 {vLane}, 63, v0", f"v_readfirstlane_b32 {sW}, v246",
      f"v_lshrrev_b32 {vG}, 4, {vLane}", f"v_and_b32 {vN}, 15, {vLane}", f"v_lshlrev_b32 v247, 4, {vN}")
    S("s_and_b32 s10, s2, 3", "s_lshl_b32 s10, s10, 8", f"s_lshl_b32 s11, {sW}, 5", "s_add_u32 s10, s10, s11",
      "s_lshl_b32 s12, s10, 13", "s_lshr_b32 s13, s2, 2", "s_and_b32 s13, s13, 31", "s_lshl_b32 s13, s13, 8", "s_add_u32 s12, s12, s13")
    S(f"v_lshl_add_u32 v246, {vG}, 15, v247", f"v_add_u32 {vWQ}, s12, v246")
    S(f"v_bfe_u32 {vB}, {vLane}, 1, 2", f"v_bfe_u32 {vXb}, {vLane}, 3, 1", f"v_lshlrev_b32 v246, 11, {vB}",
      f"v_lshl_add_u32 v246, {vXb}, 5, v246", f"v_lshl_add_u32 v246, {vG}, 3, v246", "s_lshl_b32 s10, s10, 1", f"v_add_u32 {vX}, s10, v246")
    for u in range(2):
        for t in range(4): I(f"s_mov_b32 s{80+4*u+t}, {t*8192+u*131072}")
    S("s_mov_b32 s62, 8388608", "s_mov_b32 s63, 0x00020000", "s_mov_b32 s70, 8192", "s_mov_b32 s71, 0x00020000")
    if xcd: S("s_and_b32 s4, s2, 7", "s_lshl_b32 s4, s4, 1", "s_bfe_u32 s5, s2, 0x10003", "s_add_u32 s4, s4, s5", "s_lshr_b32 s5, s2, 4")
    else: S("s_lshr_b32 s4, s2, 4", "s_and_b32 s5, s2, 15")
    S("s_lshr_b32 s14, s4, 3", "s_lshl_b32 s14, s14, 4", "s_add_u32 s14, s14, s5", "s_and_b32 s15, s4, 7")
    S("s_cmp_ge_u32 s2, 128", "s_waitcnt lgkmcnt(0)")
    S("s_cselect_b32 s60, s32, s22", "s_cselect_b32 s61, s33, s23", "s_cselect_b32 s68, s26, s16", "s_cselect_b32 s69, s27, s17")
    I(f"buffer_load_dwordx2 v[232:233], {vX}, {sX}, 0 offen", "x")
    for u in range(2):
        for t in range(4):
            I(f"buffer_load_dwordx4 {vr(WR+16*u+4*t)}, {vWQ}, {sWQ}, s{80+4*u+t} offen nt", f"wq{u}")
    I("s_load_dword s42, s[40:41], 0")
    S("s_lshl_b32 s6, s4, 21", "s_lshl_b32 s7, s5, 17", "s_add_u32 s7, s7, s6", f"s_lshl_b32 s8, {sW}, 14", "s_add_u32 s7, s7, s8",
      "s_lshl_b32 s9, s5, 15", "s_add_u32 s9, s9, s6", f"s_lshl_b32 s8, {sW}, 12", "s_add_u32 s9, s9, s8", f"s_add_u32 s9, s9, {6144*256}")
    S(f"v_lshlrev_b32 v246, 8, {vN}", f"v_lshl_add_u32 v246, {vG}, 4, v246", f"v_add_u32 {vKA}, s7, v246", f"v_add_u32 {vKB}, s9, v246",
      f"v_lshl_add_u32 v246, {vG}, 10, v247", f"v_add_u32 {vVA}, s7, v246", f"v_add_u32 {vVB}, s9, v246")
    for (d, s) in ((52,28),(44,18),(48,20),(56,30)):
        S(f"s_mov_b32 s{d}, s{s}", f"s_mov_b32 s{d+1}, s{s+1}", f"s_mov_b32 s{d+2}, 33554432", f"s_mov_b32 s{d+3}, 0x00020000")
    for j in range(1, 4): I(f"s_mov_b32 s{95+j}, {4096*j}")
    if opt.get("b1", 1): I("s_barrier")
    def loadK(j):
        for st in range(4):
            if j == 0: I(f"buffer_load_dwordx4 {vr(KR+4*st)}, {vKB}, {sKB}, 0 offen offset:{64*st} nt", "K0")
            else:
                so = "0" if j == 1 else f"s{94+j}"
                I(f"buffer_load_dwordx4 {vr(KR+16*j+4*st)}, {vKA}, {sKA}, {so} offen offset:{64*st} nt", f"K{j}")
    def loadV(j):
        for t in range(4):
            if j == 0: I(f"buffer_load_dwordx4 {vr(VR+4*t)}, {vVB}, {sVB}, 0 offen offset:{256*t} nt", "V0")
            else:
                so = "0" if j == 1 else f"s{94+j}"
                I(f"buffer_load_dwordx4 {vr(VR+16*j+4*t)}, {vVA}, {sVA}, {so} offen offset:{256*t} nt", f"V{j}")
    WO = 48
    def loadWO(u):
        for t in range(4):
            I(f"buffer_load_dwordx4 {vr(WO+16*u+4*t)}, {vWO}, {sWO}, s{88+4*u+t} offen nt", f"wo{u}")
    npre = opt.get("npre", 1)
    for j in range(npre): loadK(j)
    S("s_cmp_ge_u32 s14, 16", "s_cselect_b32 s64, s34, s24", "s_cselect_b32 s65, s35, s25", "s_mov_b32 s66, 8388608", "s_mov_b32 s67, 0x00020000")
    S("s_and_b32 s6, s14, 15", "s_lshl_b32 s6, s6, 8", "s_add_u32 s6, s6, s11", "s_lshl_b32 s6, s6, 11", "s_lshl_b32 s7, s15, 8", "s_add_u32 s6, s6, s7")
    S(f"v_lshl_add_u32 v246, {vG}, 13, v247", f"v_add_u32 {vWO}, s6, v246")
    for u in range(2):
        for t in range(4): I(f"s_mov_b32 s{88+4*u+t}, {t*2048+u*32768}")
    S("s_mov_b32 s72, s40", "s_mov_b32 s73, s41", "s_mov_b32 s74, 268435456", "s_mov_b32 s75, 0x00020000")
    S("s_mov_b32 s76, s36", "s_mov_b32 s77, s37", "s_mov_b32 s78, 16384", "s_mov_b32 s79, 0x00020000")
    S(f"s_mov_b32 {sP}, s4", f"s_mov_b32 {sS}, s5", f"s_mov_b32 {sBK}, s14", f"s_mov_b32 {sCB}, s15")
    S(f"v_and_b32 v246, 1, {vLane}", "v_cmp_eq_u32 vcc, 0, v246", "v_mov_b32 v246, 0x01000c0c", "v_mov_b32 v247, 0x0c0c0100",
      f"v_cndmask_b32 {vSE}, v246, v247, vcc", "v_mov_b32 v246, 0x03020c0c", "v_mov_b32 v247, 0x0c0c0302", f"v_cndmask_b32 {vSO}, v246, v247, vcc",
      f"v_cmp_eq_u32 vcc, 0, {vXb}", "v_mov_b32 v246, 0x0c0c0c0c",
      f"v_cndmask_b32 {vSE0}, v246, {vSE}, vcc", f"v_cndmask_b32 {vSO0}, v246, {vSO}, vcc",
      f"v_cndmask_b32 {vSE1}, {vSE}, v246, vcc", f"v_cndmask_b32 {vSO1}, {vSO}, v246, vcc")
    for i in range(4): I(f"s_mov_b32 s{8+i}, {0x07060500+i:#x}")
    S("s_mov_b32 s12, 0x0c0c0400", "s_mov_b32 s13, 0x0c040100", "s_mov_b32 s14, 0x04020100", f"s_mov_b32 {sC}, {f32(SCALE)}")
    S(f"v_lshrrev_b32 v246, 1, {vG}", f"v_lshl_add_u32 v246, {sW}, 1, v246", f"v_mul_u32_u24 v246, {RED_STR}, v246",
      f"v_and_b32 v247, 1, {vG}", "v_lshl_add_u32 v246, v247, 10, v246", f"v_lshl_add_u32 {vRW}, {vN}, 5, v246",
      f"v_mul_u32_u24 v246, {4*RED_STR}, {vG}", f"v_lshl_add_u32 v247, {sW}, 4, {vN}", f"v_lshl_add_u32 {vRR}, v247, 4, v246")
    S("s_lshr_b32 s4, s2, 2", "s_and_b32 s4, s4, 31", "s_lshl_b32 s4, s4, 2", f"s_lshr_b32 s5, {sW}, 1", "s_add_u32 s4, s4, s5", f"s_mul_i32 s4, s4, {QP_STR}",
      "s_lshr_b32 s5, s2, 7", "s_lshl_b32 s5, s5, 2", "s_and_b32 s6, s2, 3", "s_add_u32 s5, s5, s6", "s_lshl_b32 s5, s5, 9", "s_add_u32 s4, s4, s5",
      f"s_and_b32 s5, {sW}, 1", "s_lshl_b32 s5, s5, 8", "s_add_u32 s4, s4, s5", f"s_add_u32 s4, s4, {WS_QP}",
      f"v_lshlrev_b32 v246, 4, {vN}", "v_add_u32 v252, s4, v246")
    S(f"s_and_b32 s5, {sP}, 3", "s_lshl_b32 s5, s5, 3", f"s_add_u32 s5, s5, {sW}", "s_lshl_b32 s5, s5, 2",
      f"s_lshr_b32 s4, {sP}, 2", "s_add_u32 s5, s5, s4", f"s_mul_i32 s5, s5, {QP_STR}", f"s_add_u32 s5, s5, {WS_QP}")
    S(f"v_lshlrev_b32 v246, 4, {vLane}", "v_add_u32 v253, s5, v246")
    S("s_waitcnt lgkmcnt(0)", f"s_add_u32 {sEP1}, s42, 1", f"s_mul_i32 {sTAG}, {sEP1}, 0x9e3779b1",
      f"s_lshr_b32 s4, {sTAG}, 15", f"s_xor_b32 {sTAG}, {sTAG}, s4", f"s_mul_i32 {sTAG}, {sTAG}, 0x85ebca6b",
      f"s_lshr_b32 s4, {sTAG}, 13", f"s_xor_b32 {sTAG}, {sTAG}, s4", f"v_mov_b32 {vT}, {sTAG}")
    S("s_getreg_b32 s25, hwreg(HW_REG_XCC_ID)", f"s_mul_i32 s26, {sP}, {XT_STR}", f"s_add_u32 s26, s26, {WS_XT}")
    S(f"s_cmp_lg_u32 {sW}, 0", "s_cbranch_scc1 L_noxt")
    S(f"s_lshl_b32 s4, {sS}, 3", "s_add_u32 s4, s4, s26", "v_mov_b32 v246, s4", f"v_mov_b32 v{SR}, s25", f"v_mov_b32 v{SR+1}, {sTAG}", "s_mov_b64 exec, 1")
    I0(f"buffer_store_dwordx2 {vr(SR,2)}, v246, {sWS}, 0 offen sc1"); A.vm.pop()
    I("s_mov_b64 exec, -1")
    A.label("L_noxt")

    A.wait_vm("x")
    afrags(232, 224)
    for u in range(2):
        A.wait_vm(f"wq{u}"); transpose(WR+16*u); projmm(WR, 224, SR, u)
    stamp("wq arrived")
    write_acc(vRW, SR)
    npre2 = opt.get("npre2", npre)
    for j in range(npre, npre2): loadK(j)
    barrier()
    red_publish(SR, "v252", "qst")
    I("s_barrier")
    stamp("q published")
    for j in range(npre2, 5): loadK(j)
    def gatherQ(tag):
        for i in range(4): I(f"buffer_load_dwordx4 {vr(GR+4*i)}, v253, {sWS}, 0 offen offset:{1024*i} sc1", tag)
    S(f"v_lshlrev_b32 v247, 3, {vN}", "v_add_u32 v247, s26, v247")
    I0(f"buffer_load_dwordx2 {vr(SR,2)}, v247, {sWS}, 0 offen sc1", "G")
    gatherQ("G")
    I("s_barrier")
    nv1 = opt.get("nv1", 2)
    for j in range(nv1): loadV(j)
    S(f"v_lshrrev_b32 v246, 5, {vLane}", f"v_mul_u32_u24 v246, {Q_BS}, v246", f"v_and_b32 v247, 31, {vLane}", "v_lshl_add_u32 v246, v247, 3, v246",
      f"s_mul_i32 s4, {sW}, {Q_HS}", "v_add_u32 v252, s4, v246")
    S(f"v_lshrrev_b32 v247, 1, {vN}", f"v_mul_u32_u24 v247, {Q_HS}, v247", f"v_lshl_add_u32 v254, {vG}, 4, v247")
    I("s_mov_b32 s15, 0")
    A.wait_vm("G")
    stamp("G arrived")
    S(f"v_cmp_ne_u32 s[6:7], s25, v{SR}", f"v_cmp_ne_u32 vcc, {vT}, v{SR+1}", "s_or_b64 s[6:7], s[6:7], vcc", "s_cmp_eq_u64 s[6:7], 0", "s_cselect_b32 s22, 1, 0")
    if opt.get("noloc"): I("s_mov_b32 s22, 0")
    A.label("L_qchk")
    for i in range(4): chk4(GR+4*i, "v246", i == 0)
    if opt.get("noq"): I("s_mov_b64 s[6:7], 0")
    S("s_cmp_eq_u64 s[6:7], 0", "s_cbranch_scc1 L_qok", "s_add_u32 s15, s15, 1", "s_cmp_gt_u32 s15, 20000", "s_cbranch_scc1 L_qok")
    nvm = len(A.vm)
    gatherQ("G2")
    S("s_waitcnt vmcnt(0)", "s_branch L_qchk")
    del A.vm[nvm:]
    A.label("L_qok")
    stamp("G ok")
    for j in range(0, 4, 2):
        I(f"v_pk_add_f32 {vr(GR+j,2)}, {vr(GR+j,2)}, {vr(GR+4+j,2)}")
        I(f"v_pk_add_f32 {vr(GR+8+j,2)}, {vr(GR+8+j,2)}, {vr(GR+12+j,2)}")
    for j in range(4): I(f"v_permlane32_swap_b32 v{GR+j}, v{GR+8+j}")
    for j in range(0, 4, 2): I(f"v_pk_add_f32 {vr(GR+j,2)}, {vr(GR+j,2)}, {vr(GR+8+j,2)}")
    S(f"v_cvt_pk_bf16_f32 v{GR}, v{GR}, v{GR+1}", f"v_cvt_pk_bf16_f32 v{GR+1}, v{GR+2}, v{GR+3}")
    I(f"ds_write_b64 v252, {vr(GR,2)} offset:{L_Q}")
    barrier()
    QA, QB = WR, WR+16
    for st in range(4): I(f"ds_read_b128 {vr(QB+4*st)}, v254 offset:{L_Q+Q_BS+64*st}")
    for st in range(4): I(f"ds_read_b128 {vr(QA+4*st)}, v254 offset:{L_Q+64*st}")
    S(f"v_lshrrev_b32 v246, 5, {vLane}", f"v_lshl_add_u32 v246, v246, 4, {vN}", "v_lshlrev_b32 v246, 5, v246",
      f"v_lshl_add_u32 v253, {sW}, 2, v246", f"v_lshlrev_b32 v252, 5, {vN}")
    I("s_waitcnt lgkmcnt(0)")
    for st in range(4):
        for j in range(5):
            q = QB if j == 0 else QA
            c = "0" if st == 0 else vr(SR+4*j)
            I(f"v_mfma_f32_16x16x32_bf16 {vr(SR+4*j)}, {vr(KR+16*j+4*st)}, {vr(q+4*st)}, {c}")
    nvq = opt.get("nvq", nv1)
    for j in range(nv1, nvq): loadV(j)
    stamp("QK done")
    TM = 80
    mA, mB = f"v{TM}", f"v{TM+1}"
    S(f"v_max3_f32 {mB}, v{SR}, v{SR+1}, v{SR+2}", f"v_max_f32 {mB}, {mB}, v{SR+3}", f"v_max3_f32 {mA}, v{SR+4}, v{SR+5}, v{SR+6}")
    for k in range(SR+7, SR+19, 2): I(f"v_max3_f32 {mA}, {mA}, v{k}, v{k+1}")
    I(f"v_max_f32 {mA}, {mA}, v{SR+19}")
    def xreduce(a, b, op, t):
        S(f"v_permlane32_swap_b32 {a}, {b}", f"{op} {a}, {a}, {b}", f"v_mov_b32 {t}, {a}", f"v_permlane16_swap_b32 {a}, {t}", f"{op} {a}, {a}, {t}")
    xreduce(mA, mB, "v_max_f32", f"v{TM+2}")
    I(f"ds_write_b32 v253, {mA} offset:{L_MX}")
    barrier()
    R = WR
    for k in range(4): I(f"ds_read_b128 {vr(R+4*k)}, v252 offset:{L_MX+(k>>1)*512+(k&1)*16}")
    I("s_waitcnt lgkmcnt(0)")
    for (m, b) in ((mA, R), (mB, R+8)):
        S(f"v_max3_f32 {m}, v{b}, v{b+1}, v{b+2}", f"v_max3_f32 {m}, {m}, v{b+3}, v{b+4}", f"v_max3_f32 {m}, {m}, v{b+5}, v{b+6}", f"v_max_f32 {m}, {m}, v{b+7}")
    S(f"v_mul_f32 {mA}, {sC}, {mA}", f"v_mul_f32 {mB}, {sC}, {mB}")
    for k in range(20):
        I(f"v_fma_f32 v{SR+k}, v{SR+k}, {sC}, -{mB if k < 4 else mA}")
    for k in range(20): I(f"v_exp_f32 v{SR+k}, v{SR+k}")
    lA, lB = f"v{TM+4}", f"v{TM+5}"
    S(f"v_add_f32 {lB}, v{SR}, v{SR+1}", f"v_add_f32 {lB}, {lB}, v{SR+2}", f"v_add_f32 {lB}, {lB}, v{SR+3}", f"v_add_f32 {lA}, v{SR+4}, v{SR+5}")
    for k in range(6, 20): I(f"v_add_f32 {lA}, {lA}, v{SR+k}")
    xreduce(lA, lB, "v_add_f32", f"v{TM+2}")
    I(f"ds_write_b32 v253, {lA} offset:{L_LS}")
    S(f"s_lshl_b32 s4, {sW}, 1", f"v_readlane_b32 s42, {mA}, s4", f"v_readlane_b32 s43, {mB}, s4")
    for j in range(5):
        b = SR+4*j
        S(f"v_cvt_pk_bf16_f32 v{TM+6}, v{b}, v{b+1}", f"v_cvt_pk_bf16_f32 v{TM+7}, v{b+2}, v{b+3}",
          f"v_perm_b32 v{b}, v{TM+6}, v{TM+6}, {vSE}", f"v_perm_b32 v{b+1}, v{TM+6}, v{TM+6}, {vSO}",
          f"v_perm_b32 v{b+2}, v{TM+7}, v{TM+7}, {vSE}", f"v_perm_b32 v{b+3}, v{TM+7}, v{TM+7}, {vSO}")
    stamp("softmax done")
    nv2 = opt.get("nv2", 3)
    for j in range(nvq, nv2): loadV(j)
    OA, OB = 16, 32
    def pv(j, O, first):
        A.wait_vm(f"V{j}")
        transpose(VR+16*j)
        for r in range(4):
            c = "0" if first else vr(O+4*r)
            I(f"v_mfma_f32_16x16x32_bf16 {vr(O+4*r)}, {vr(SR+4*j)}, {vr(VR+16*j+4*r)}, {c}")
    vOW, vOR, vOS, vLSs, vLSr = [f"v{TM+8+i}" for i in range(5)]
    S(f"s_mul_i32 s4, {sW}, {O_STR}", f"v_lshlrev_b32 v246, 10, {vG}", f"v_lshl_add_u32 v246, {vN}, 5, v246", f"v_add_u32 {vOW}, s4, v246",
      f"v_lshrrev_b32 v246, 5, {vLane}", f"v_mul_u32_u24 v246, {4*O_STR}, v246", f"v_and_b32 v247, 31, {vLane}", f"v_lshl_add_u32 v247, {sW}, 5, v247", f"v_lshl_add_u32 {vOR}, v247, 4, v246")
    S(f"s_lshl_b32 s5, {sP}, 17", f"s_lshl_b32 s6, {sW}, 13", "s_add_u32 s5, s5, s6", f"s_lshl_b32 s7, {sS}, 8", "s_add_u32 s5, s5, s7", f"s_add_u32 s5, s5, {WS_OP}")
    S(f"v_and_b32 v246, 1, {vG}", "v_lshlrev_b32 v246, 12, v246", f"v_lshl_add_u32 v246, {vN}, 4, v246", f"v_add_u32 {vOS}, s5, v246")
    S(f"s_lshl_b32 s5, {sP}, 4", f"s_add_u32 s5, s5, {sW}", f"s_mul_i32 s5, s5, {LSE_STR}", f"s_lshl_b32 s7, {sS}, 3", "s_add_u32 s5, s5, s7",
      f"s_add_u32 s5, s5, {WS_LSE}", f"v_mov_b32 {vLSs}, s5", f"s_lshl_b32 s4, {sW}, 6", f"v_mov_b32 {vLSr}, s4",
      "s_mov_b32 s20, 65536", f"s_mov_b32 s21, {8*LSE_STR}")
    def publishO(br, O, Lb):
        I(f"v_add_u32 v246, {Lb}, {vOW}")
        write_acc("v246", O)
        I(f"v_add_u32 v247, {Lb}, {vOR}")
        if br == 0 and opt.get("wolate", 0) == 5:
            for u in range(opt.get("wosplit", 0)): loadWO(u)
        barrier()
        for j in range(4): I(f"ds_read_b128 {vr(R+4*j)}, v247 offset:{j*O_STR}")
        for k in range(2): I(f"ds_read_b128 {vr(R+16+4*k)}, {vLSr} offset:{L_LS+br*512+16*k}")
        I("s_waitcnt lgkmcnt(0)")
        I(f"v_pk_add_f32 {vr(R+16,2)}, {vr(R+16,2)}, {vr(R+18,2)}")
        I(f"v_pk_add_f32 {vr(R+20,2)}, {vr(R+20,2)}, {vr(R+22,2)}")
        I(f"v_pk_add_f32 {vr(R+16,2)}, {vr(R+16,2)}, {vr(R+20,2)}")
        I(f"v_add_f32 v{R+16}, v{R+16}, v{R+17}")
        S(f"v_rcp_f32 v{R+18}, v{R+16}", f"v_log_f32 v{R+20}, v{R+16}")
        sum4(R)
        S(f"v_add_f32 v{R+20}, s{42+br}, v{R+20}", f"v_mov_b32 v{R+21}, {vT}")
        S(f"v_permlane32_swap_b32 v{R}, v{R+1}", f"v_permlane32_swap_b32 v{R+2}, v{R+3}",
          f"v_add_f32 v{R}, v{R}, v{R+1}", f"v_add_f32 v{R+2}, v{R+2}, v{R+3}",
          f"v_mul_f32 v{R}, v{R}, v{R+18}", f"v_mul_f32 v{R+2}, v{R+2}, v{R+18}",
          f"v_mov_b32 v{R+1}, v{R}", f"v_mov_b32 v{R+3}, v{R+2}",
          f"v_permlane32_swap_b32 v{R}, v{R+1}", f"v_permlane32_swap_b32 v{R+2}, v{R+3}")
        tag4(R)
        lstore([(["s_mov_b32 exec_lo, -1", "s_mov_b32 exec_hi, 0"], f"buffer_store_dwordx4 {vr(R)}, {vOS}, {sWS}, {'0' if br == 0 else 's20'} offen", f"ost{br}"),
                (["s_mov_b64 exec, 1"], f"buffer_store_dwordx2 {vr(R+20,2)}, {vLSs}, {sWS}, {'0' if br == 0 else 's21'} offen", f"ost{br}")])
    pv(0, OB, True)
    publishO(1, OB, L_OB)
    if nv2 < 5: I("s_barrier")
    stamp("B published")
    for j in range(nv2, 5): loadV(j)
    wosplit = opt.get("wosplit", 0)
    wolate = opt.get("wolate", 0)
    if wolate == 0:
        for u in range(wosplit): loadWO(u)
    vCS, vOCg = vVB, vWQ
    S(f"s_lshl_b32 s4, {sP}, 1", f"s_and_b32 s5, {sW}, 1", "s_add_u32 s4, s4, s5",
      "s_lshl_b32 s6, s4, 4", f"s_add_u32 s6, s6, {sS}", "s_lshl_b32 s6, s6, 12", f"s_add_u32 s6, s6, {WS_OP}",
      f"v_lshlrev_b32 v246, 4, {vLane}", "v_add_u32 v252, s6, v246",
      "s_lshl_b32 s6, s4, 3", f"s_lshr_b32 s7, {sS}, 1", "s_add_u32 s6, s6, s7", f"s_mul_i32 s6, s6, {LSE_STR}", f"s_add_u32 s6, s6, {WS_LSE}",
      f"v_lshlrev_b32 v246, 3, {vN}", "v_add_u32 v253, s6, v246")
    S("s_lshl_b32 s6, s5, 7", f"s_and_b32 s7, {sP}, 3", "s_lshl_b32 s7, s7, 5", "s_add_u32 s6, s6, s7", f"s_lshl_b32 s7, {sS}, 1", "s_add_u32 s6, s6, s7",
      f"s_mul_i32 s6, s6, {OC_STR}", f"s_lshr_b32 s7, {sP}, 2", "s_lshl_b32 s7, s7, 7", "s_add_u32 s6, s6, s7", f"s_add_u32 s6, s6, {WS_OC}",
      f"v_lshrrev_b32 v246, 3, {vN}", f"v_mul_u32_u24 v246, {OC_STR}, v246", f"v_and_b32 v247, 7, {vN}", "v_lshl_add_u32 v246, v247, 4, v246", f"v_add_u32 {vCS}, s6, v246")
    I(f"v_lshlrev_b32 v254, 2, {vG}")
    S(f"s_lshl_b32 s6, {sBK}, 3", f"s_add_u32 s6, s6, {sW}", f"s_mul_i32 s6, s6, {OC_STR}", f"s_add_u32 s6, s6, {WS_OC}",
      f"v_lshlrev_b32 v246, 7, {vB}", f"v_lshl_add_u32 v246, {vXb}, 6, v246", f"v_lshl_add_u32 v246, {vG}, 4, v246", f"v_add_u32 {vOCg}, s6, v246")
    vFS, vFG = vKA, vKB
    S(f"s_lshr_b32 s4, {sBK}, 4", "s_lshl_b32 s4, s4, 3", f"s_add_u32 s4, s4, {sCB}", "s_lshl_b32 s4, s4, 4",
      f"s_and_b32 s5, {sBK}, 15", f"s_lshl_b32 s6, {sW}, 1", "s_add_u32 s6, s6, s4", f"s_mul_i32 s6, s6, {FP_STR}",
      "s_lshl_b32 s7, s5, 7", "s_add_u32 s6, s6, s7", f"s_add_u32 s6, s6, {WS_FP}")
    S(f"v_lshrrev_b32 v246, 3, {vN}", f"v_mul_u32_u24 v246, {FP_STR}, v246", f"v_and_b32 v247, 7, {vN}", "v_lshl_add_u32 v246, v247, 4, v246", f"v_add_u32 {vFS}, s6, v246")
    S("s_add_u32 s6, s4, s5", f"s_mul_i32 s6, s6, {FP_STR}", f"s_add_u32 s6, s6, {WS_FP}")
    S(f"v_lshlrev_b32 v246, 4, {vLane}", f"v_add_u32 {vFG}, s6, v246")
    for j in range(1, 5):
        pv(j, OA, j == 1)
        if wolate == j:
            for u in range(wosplit): loadWO(u)
    stamp("PV done")
    publishO(0, OA, L_OA)
    I("s_barrier")
    stamp("A published")
    DG, LG, TT = 96, 112, 144
    def cgather():
        I(f"buffer_load_dwordx2 {vr(LG,2)}, v253, {sWS}, 0 offen sc1")
        for i in range(4): I(f"buffer_load_dwordx4 {vr(DG+4*i)}, v252, {sWS}, 0 offen offset:{1024*i} sc1")
    womid = opt.get("womid", 1)
    S("s_mov_b32 s23, 0", "s_mov_b32 s24, 0", "s_mov_b32 s15, 0", f"s_cmp_gt_u32 {sW}, 1", "s_cbranch_scc1 L_cng")
    nvm = len(A.vm); cgather(); del A.vm[nvm:]
    A.label("L_cng")
    for u in range(wosplit, womid): loadWO(u)
    S(f"s_cmp_gt_u32 {sW}, 1", "s_cbranch_scc1 L_cskip")
    I(f"s_waitcnt vmcnt({4*(womid-wosplit)})")
    I("s_branch L_cchk")
    nvm = len(A.vm)
    A.label("L_c")
    cgather()
    I("s_waitcnt vmcnt(0)")
    A.label("L_cchk")
    for i in range(4): chk4(DG+4*i, "v246", i == 0)
    S(f"v_cmp_ne_u32 vcc, v{LG+1}, {vT}", "s_or_b64 s[6:7], s[6:7], vcc", "s_cmp_eq_u64 s[6:7], 0", "s_cbranch_scc1 L_cdo")
    S("s_mov_b32 s24, 1", "s_cmp_eq_u32 s23, 0", "s_cbranch_scc1 L_cskip")
    S("s_add_u32 s15, s15, 1", "s_cmp_gt_u32 s15, 20000", "s_cbranch_scc0 L_c")
    A.label("L_cdo")
    I(f"v_mov_b32 v{TT}, v{LG}")
    for k in (8, 4, 2, 1): dpp("v_max_f32", TT, f"row_ror:{k}")
    S(f"v_sub_f32 v{LG}, v{LG}, v{TT}", f"v_exp_f32 v{LG}, v{LG}", f"v_mov_b32 v{TT+1}, v{LG}")
    for k in (8, 4, 2, 1): dpp("v_add_f32", TT+1, f"row_ror:{k}")
    S(f"v_rcp_f32 v{TT+1}, v{TT+1}", f"v_mul_f32 v{LG}, v{LG}, v{TT+1}")
    for i in range(4): I(f"ds_bpermute_b32 v{LG+2+i}, v254, v{LG} offset:{16*i}")
    I("s_waitcnt lgkmcnt(0)")
    AC = TT+4
    for j in range(4): I(f"v_mul_f32 v{AC+j}, v{LG+2}, v{DG+j}")
    for i in range(1, 4):
        for j in range(4): I(f"v_fmac_f32 v{AC+j}, v{LG+2+i}, v{DG+4*i+j}")
    xrow(AC)
    tag4(AC)
    I("s_mov_b64 exec, 0xffff")
    I(f"buffer_store_dwordx4 {vr(AC)}, {vCS}, {sWS}, 0 offen sc1")
    S("s_mov_b64 exec, -1", "s_mov_b32 s24, 0", "s_cmp_lg_u32 s23, 0", "s_cbranch_scc1 L_cend")
    del A.vm[nvm:]
    A.label("L_cskip")
    I("s_barrier")
    stamp("C1 done")
    for u in range(womid, 2): loadWO(u)
    S("s_mov_b32 s23, 1", "s_cmp_lg_u32 s24, 0", "s_cbranch_scc1 L_c")
    A.label("L_cend")
    OG = 120
    I(f"buffer_load_dwordx4 {vr(OG)}, {vOCg}, {sWS}, 0 offen sc1", "GO")
    A.wait_vm("wo0"); transpose(WO)
    A.wait_vm("wo1"); transpose(WO+16)
    stamp("wo arrived")
    I("s_mov_b32 s15, 0")
    A.wait_vm("GO")
    A.label("L_ochk")
    chk4(OG, "v246", True)
    S("s_cmp_eq_u64 s[6:7], 0", "s_cbranch_scc1 L_ook", "s_add_u32 s15, s15, 1", "s_cmp_gt_u32 s15, 20000", "s_cbranch_scc1 L_ook")
    nvm = len(A.vm)
    I(f"buffer_load_dwordx4 {vr(OG)}, {vOCg}, {sWS}, 0 offen sc1")
    S("s_waitcnt vmcnt(0)", "s_branch L_ochk")
    del A.vm[nvm:]
    A.label("L_ook")
    stamp("GO ok")
    S(f"v_cvt_pk_bf16_f32 v{TT+8}, v{OG}, v{OG+1}", f"v_cvt_pk_bf16_f32 v{TT+9}, v{OG+2}, v{OG+3}")
    afrags(TT+8, 224)
    for u in range(2): projmm(WO, 224, SR, u)
    write_acc(vRW, SR)
    barrier()
    red_publish(SR, vFS, "fst", local=True)
    stamp("F published")
    S(f"s_cmp_lg_u32 {sW}, 0", "s_cbranch_scc1 L_fin")
    S(f"s_and_b32 s4, {sBK}, 15", "s_lshr_b32 s5, s4, 2", "s_lshl_b32 s5, s5, 12", "s_and_b32 s4, s4, 3", "s_lshl_b32 s4, s4, 6", "s_add_u32 s5, s5, s4",
      f"s_lshr_b32 s4, {sBK}, 4", "s_lshl_b32 s4, s4, 11", "s_add_u32 s5, s5, s4", f"s_lshl_b32 s4, {sCB}, 8", "s_add_u32 s5, s5, s4")
    S(f"v_and_b32 v252, 7, {vLane}", "v_lshlrev_b32 v252, 3, v252", f"v_and_b32 v247, 1, {vG}", "v_lshl_add_u32 v252, v247, 2, v252",
      f"v_lshrrev_b32 v247, 1, {vG}", "v_lshl_add_u32 v252, v247, 1, v252", "v_add_u32 v252, s5, v252")
    I("s_mov_b32 s15, 0")
    A.label("L_fl")
    I(f"buffer_load_dwordx4 {vr(DG)}, {vFG}, {sWS}, 0 offen sc1")
    I(f"buffer_load_dwordx4 {vr(DG+4)}, {vFG}, {sWS}, 0 offen offset:1024 sc1")
    I("s_waitcnt vmcnt(0)")
    chk4(DG, "v246", True); chk4(DG+4, "v246", False)
    S("s_cmp_eq_u64 s[6:7], 0", "s_cbranch_scc1 L_fok", "s_add_u32 s15, s15, 1", "s_cmp_gt_u32 s15, 20000", "s_cbranch_scc0 L_fl")
    A.label("L_fok")
    stamp("F ok")
    S(f"v_pk_add_f32 {vr(DG,2)}, {vr(DG,2)}, {vr(DG+4,2)}", f"v_pk_add_f32 {vr(DG+2,2)}, {vr(DG+2,2)}, {vr(DG+6,2)}",
      f"v_permlane32_swap_b32 v{DG}, v{DG+1}", f"v_permlane32_swap_b32 v{DG+2}, v{DG+3}",
      f"v_add_f32 v{DG}, v{DG}, v{DG+1}", f"v_add_f32 v{DG+2}, v{DG+2}, v{DG+3}",
      f"v_permlane16_swap_b32 v{DG}, v{DG+2}", f"v_add_f32 v{DG}, v{DG}, v{DG+2}")
    dpp("v_add_f32", DG, "row_ror:8")
    I(f"v_cvt_pk_bf16_f32 v{DG}, v{DG}, v{DG}")
    S("s_mov_b32 exec_lo, 0x00ff00ff", "s_mov_b32 exec_hi, 0x00ff00ff")
    I(f"buffer_store_short v{DG}, v252, {sOUT}, 0 offen")
    S("s_mov_b64 exec, -1", "s_cmp_lg_u32 s2, 0", "s_cbranch_scc1 L_fin")
    S("v_mov_b32 v246, 0", f"v_mov_b32 v247, {sEP1}", "s_mov_b64 exec, 1")
    I(f"buffer_store_dword v247, v246, {sWS}, 0 offen")
    I("s_mov_b64 exec, -1")
    A.label("L_fin")
    if ts and opt.get("dbg"):
        nts[0] = 14; stamp("end")
        S(f"v_readlane_b32 s4, {vTS}, 0", "s_not_b32 s4, s4", f"v_writelane_b32 {vTS}, s4, 15")
        S("s_mov_b32 s20, s38", "s_mov_b32 s21, s39", "s_mov_b32 s22, 256", "s_mov_b32 s23, 0x00020000")
        S(f"v_lshlrev_b32 v246, 2, {vLane}", "s_mov_b64 exec, 0xffff")
        I(f"buffer_atomic_umax {vTS}, v246, s[20:23], 0 offen")
    elif ts:
        nts[0] = 31; stamp("end")
        S("s_lshl_b32 s4, s2, 3", f"s_add_u32 s4, s4, {sW}", "s_lshl_b32 s4, s4, 7", f"s_add_u32 s4, s4, {WS_TS}",
          f"v_lshlrev_b32 v246, 2, {vLane}", "v_add_u32 v246, s4, v246", "s_mov_b32 exec_lo, -1", "s_mov_b32 exec_hi, 0")
        I(f"buffer_store_dword {vTS}, v246, {sWS}, 0 offen")
    A.raw("L_end:")
    I("s_endpgm")
    A.raw(f""".section .rodata,"a"
.p2align 6
.amdhsa_kernel {NAME}_kernel
  .amdhsa_next_free_vgpr 256
  .amdhsa_next_free_sgpr 102
  .amdhsa_accum_offset 256
  .amdhsa_group_segment_fixed_size 0
  .amdhsa_kernarg_size 104
  .amdhsa_user_sgpr_count 2
  .amdhsa_user_sgpr_kernarg_segment_ptr 1
  .amdhsa_system_sgpr_workgroup_id_x 1
.end_amdhsa_kernel""")
    return A.text()

if __name__ == "__main__":
    ts = "--ts" in sys.argv
    out = sys.argv[1]
    opt = {}
    for a in sys.argv[2:]:
        if "=" in a:
            k, v = a.split("="); opt[k] = int(v) if v.isdigit() else v
    open(out, "w").write(gen(ts=ts, opt=opt))
```

```python
import sys, struct
sys.path.insert(0, "dev")
from asmlib import Asm
NAME = "concat_heads__gqa_block_cached__sliding_block_cached__decode"
HEADER = open("cdna_kernels/" + NAME + ".s.ref").read().split("; Override launch geometry")[0]

WS_OP = 0x200000; WS_QP = 0x400000; WS_LSE = 0x700000; WS_FP = 0xA00000; WS_OC = 0xD00000; WS_XT = 0x1000; WS_TS = 0x1000000
QP_STR = 0x5000; LSE_STR = 0x2100; FP_STR = 0x2800; OC_STR = 0x2200; XT_STR = 0x2100
L_RED = 0; RED_STR = 2064
L_Q = 33024; Q_HS = 272; Q_BS = 2176
L_MX = 37376; L_LS = 38400
L_OB = 39424; L_OA = 72448; O_STR = 4128
LDS_BYTES = 105472
SCALE = (128 ** -0.5) * 1.4426950408889634
def f32(x): return "0x%08x" % struct.unpack("<I", struct.pack("<f", x))[0]

sKA, sVA, sKB, sVB, sWQ, sWO, sX, sWS, sOUT = [f"s[{44+4*i}:{47+4*i}]" for i in range(9)]
sW = "s3"
sP, sS, sBK, sCB = "s16", "s17", "s18", "s19"
sTAG = "s99"; sEP1 = "s100"; sC = "s101"
vLane, vG, vN = "v1", "v2", "v3"
vKA, vKB, vVA, vVB, vWQ, vWO, vX = "v4", "v5", "v6", "v7", "v8", "v9", "v10"
vSE, vSO, vSE0, vSO0, vSE1, vSO1 = "v11", "v12", "v13", "v14", "v15", "v244"
vT = "v245"; vB = "v248"; vXb = "v249"; vRW = "v250"; vRR = "v251"; vTS = "v255"
KR, VR, WR, SR, GR = 16, 96, 176, 208, 228
def vr(b, n=4): return f"v[{b}:{b+n-1}]"

def gen(ts=False, opt=None):
    opt = opt or {}
    xcd = opt.get("xcd", 1)
    A = Asm(); I0 = A.I
    def I(text, tag=None):
        if opt.get("noq") and tag == "qst" and opt["noq"] & 1: return I0("s_nop 0")
        if opt.get("noq") and tag in ("G", "G2") and "x4" in text and opt["noq"] & 2: return I0("s_nop 0")
        if opt.get("gnt") and text.startswith("buffer_load") and text.endswith("sc1"):
            isq = tag in ("G", "G2")
            if (isq and opt["gnt"] & 1) or (not isq and opt["gnt"] & 2): text += " nt"
        return I0(text, tag)
    def S(*lines):
        for l in lines: I(l)
    nts = [0]
    def stamp(name=""):
        if not ts: return
        k = nts[0]; nts[0] += 1
        assert k < 32
        S("s_memrealtime s[4:5]", "s_waitcnt lgkmcnt(0)", f"v_writelane_b32 {vTS}, s4, {k}")
    def transpose(b):
        for (x, y) in ((1,4),(2,8),(3,12),(6,9),(7,13),(11,14)):
            I(f"v_swap_b32 v{b+x}, v{b+y}")
    def tag4(b):
        for i in range(4): I(f"v_perm_b32 v{b+i}, v{b+i}, {vT}, s{8+i}")
    def chk4(b, tmp, first):
        I(f"v_perm_b32 {tmp}, v{b+1}, v{b}, s12")
        I(f"v_perm_b32 {tmp}, v{b+2}, {tmp}, s13")
        I(f"v_perm_b32 {tmp}, v{b+3}, {tmp}, s14")
        if first: I(f"v_cmp_ne_u32 s[6:7], {tmp}, {vT}")
        else: S(f"v_cmp_ne_u32 vcc, {tmp}, {vT}", "s_or_b64 s[6:7], s[6:7], vcc")
    def write_acc(vaddr, d):
        I(f"ds_write2_b64 {vaddr}, {vr(d,2)}, {vr(d+4,2)} offset0:0 offset1:1")
        I(f"ds_write2_b64 {vaddr}, {vr(d+8,2)}, {vr(d+12,2)} offset0:2 offset1:3")
        I(f"ds_write2_b64 {vaddr}, {vr(d+2,2)}, {vr(d+6,2)} offset0:64 offset1:65")
        I(f"ds_write2_b64 {vaddr}, {vr(d+10,2)}, {vr(d+14,2)} offset0:66 offset1:67")
    def barrier():
        S("s_waitcnt lgkmcnt(0)", "s_barrier")
    def sum4(D):
        I(f"v_pk_add_f32 {vr(D,2)}, {vr(D,2)}, {vr(D+4,2)}")
        I(f"v_pk_add_f32 {vr(D+2,2)}, {vr(D+2,2)}, {vr(D+6,2)}")
        I(f"v_pk_add_f32 {vr(D+8,2)}, {vr(D+8,2)}, {vr(D+12,2)}")
        I(f"v_pk_add_f32 {vr(D+10,2)}, {vr(D+10,2)}, {vr(D+14,2)}")
        I(f"v_pk_add_f32 {vr(D,2)}, {vr(D,2)}, {vr(D+8,2)}")
        I(f"v_pk_add_f32 {vr(D+2,2)}, {vr(D+2,2)}, {vr(D+10,2)}")
    def dpp(op, r, ctl): I(f"{op}_dpp v{r}, v{r}, v{r} {ctl} row_mask:0xf bank_mask:0xf")
    def afrags(xb, af):
        for u, (se, so) in enumerate(((vSE0, vSO0), (vSE1, vSO1))):
            I(f"v_perm_b32 v{af+4*u+0}, v{xb}, v{xb}, {se}")
            I(f"v_perm_b32 v{af+4*u+1}, v{xb}, v{xb}, {so}")
            I(f"v_perm_b32 v{af+4*u+2}, v{xb+1}, v{xb+1}, {se}")
            I(f"v_perm_b32 v{af+4*u+3}, v{xb+1}, v{xb+1}, {so}")
    def projmm(Wb, af, D, u):
        for r in range(4):
            c = "0" if u == 0 else vr(D+4*r)
            I(f"v_mfma_f32_16x16x32_bf16 {vr(D+4*r)}, {vr(af+4*u)}, {vr(Wb+16*u+4*r)}, {c}")
    nlab = [0]
    def lstore(stores):
        n = nlab[0]; nlab[0] += 1
        S("s_cmp_lg_u32 s22, 0", f"s_cbranch_scc1 L_sl{n}")
        for pre, txt, tag in stores:
            S(*pre); I(txt + " sc1", tag)
        I(f"s_branch L_sd{n}")
        A.label(f"L_sl{n}")
        for pre, txt, tag in stores:
            S(*pre); I(txt, tag); A.vm.pop()
        A.label(f"L_sd{n}")
        I("s_mov_b64 exec, -1")
    def xrow(D):
        a0, a1, a2, a3 = [f"v{D+j}" for j in range(4)]
        S(f"v_permlane32_swap_b32 {a0}, {a2}", f"v_permlane32_swap_b32 {a1}, {a3}",
          f"v_add_f32 {a0}, {a0}, {a2}", f"v_add_f32 {a1}, {a1}, {a3}",
          f"v_permlane16_swap_b32 {a0}, {a1}", f"v_add_f32 {a0}, {a0}, {a1}",
          f"v_mov_b32 {a1}, {a0}", f"v_permlane16_swap_b32 {a0}, {a1}",
          f"v_mov_b32 {a2}, {a0}", f"v_mov_b32 {a3}, {a1}",
          f"v_permlane32_swap_b32 {a0}, {a2}", f"v_permlane32_swap_b32 {a1}, {a3}")
    def red_publish(D, vaddr, tag, local=False):
        for j in range(4): I(f"ds_read_b128 {vr(D+4*j)}, {vRR} offset:{L_RED+j*RED_STR}")
        I("s_waitcnt lgkmcnt(0)")
        sum4(D)
        xrow(D)
        tag4(D)
        if local:
            lstore([(["s_mov_b64 exec, 0xffff"], f"buffer_store_dwordx4 {vr(D)}, {vaddr}, {sWS}, 0 offen", tag)])
        else:
            S("s_mov_b64 exec, 0xffff")
            I(f"buffer_store_dwordx4 {vr(D)}, {vaddr}, {sWS}, 0 offen sc1", tag)
            I("s_mov_b64 exec, -1")

    A.raw(HEADER.rstrip())
    A.raw(f"; @launch grid=(256,1,1) block=(512,1,1) lds={LDS_BYTES}")
    A.raw('.amdgcn_target "amdgcn-amd-amdhsa--gfx950"\n.text')
    A.raw(f".globl {NAME}_kernel\n.p2align 8\n.type {NAME}_kernel,@function\n{NAME}_kernel:")
    S("s_cmp_ge_u32 s2, 256", "s_cbranch_scc1 L_end")
    S("s_load_dwordx16 s[16:31], s[0:1], 0", "s_load_dwordx8 s[32:39], s[0:1], 64", "s_load_dwordx2 s[40:41], s[0:1], 96")
    if ts: I(f"v_mov_b32 {vTS}, 0")
    stamp("start")
    S("v_lshrrev_b32 v246, 6, v0", f"v_and_b32 {vLane}, 63, v0", f"v_readfirstlane_b32 {sW}, v246",
      f"v_lshrrev_b32 {vG}, 4, {vLane}", f"v_and_b32 {vN}, 15, {vLane}", f"v_lshlrev_b32 v247, 4, {vN}")
    S("s_and_b32 s10, s2, 3", "s_lshl_b32 s10, s10, 8", f"s_lshl_b32 s11, {sW}, 5", "s_add_u32 s10, s10, s11",
      "s_lshl_b32 s12, s10, 13", "s_lshr_b32 s13, s2, 2", "s_and_b32 s13, s13, 31", "s_lshl_b32 s13, s13, 8", "s_add_u32 s12, s12, s13")
    S(f"v_lshl_add_u32 v246, {vG}, 15, v247", f"v_add_u32 {vWQ}, s12, v246")
    S(f"v_bfe_u32 {vB}, {vLane}, 1, 2", f"v_bfe_u32 {vXb}, {vLane}, 3, 1", f"v_lshlrev_b32 v246, 11, {vB}",
      f"v_lshl_add_u32 v246, {vXb}, 5, v246", f"v_lshl_add_u32 v246, {vG}, 3, v246", "s_lshl_b32 s10, s10, 1", f"v_add_u32 {vX}, s10, v246")
    for u in range(2):
        for t in range(4): I(f"s_mov_b32 s{80+4*u+t}, {t*8192+u*131072}")
    S("s_mov_b32 s62, 8388608", "s_mov_b32 s63, 0x00020000", "s_mov_b32 s70, 8192", "s_mov_b32 s71, 0x00020000")
    if xcd: S("s_and_b32 s4, s2, 7", "s_lshl_b32 s4, s4, 1", "s_bfe_u32 s5, s2, 0x10003", "s_add_u32 s4, s4, s5", "s_lshr_b32 s5, s2, 4")
    else: S("s_lshr_b32 s4, s2, 4", "s_and_b32 s5, s2, 15")
    S("s_lshr_b32 s14, s4, 3", "s_lshl_b32 s14, s14, 4", "s_add_u32 s14, s14, s5", "s_and_b32 s15, s4, 7")
    S("s_cmp_ge_u32 s2, 128", "s_waitcnt lgkmcnt(0)")
    S("s_cselect_b32 s60, s32, s22", "s_cselect_b32 s61, s33, s23", "s_cselect_b32 s68, s26, s16", "s_cselect_b32 s69, s27, s17")
    I(f"buffer_load_dwordx2 v[232:233], {vX}, {sX}, 0 offen", "x")
    for u in range(2):
        for t in range(4):
            I(f"buffer_load_dwordx4 {vr(WR+16*u+4*t)}, {vWQ}, {sWQ}, s{80+4*u+t} offen nt", f"wq{u}")
    I("s_load_dword s42, s[40:41], 0")
    S("s_lshl_b32 s6, s4, 21", "s_lshl_b32 s7, s5, 17", "s_add_u32 s7, s7, s6", f"s_lshl_b32 s8, {sW}, 14", "s_add_u32 s7, s7, s8",
      "s_lshl_b32 s9, s5, 15", "s_add_u32 s9, s9, s6", f"s_lshl_b32 s8, {sW}, 12", "s_add_u32 s9, s9, s8", f"s_add_u32 s9, s9, {6144*256}")
    klds = opt.get("klds", 1)
    if klds: S(f"v_lshlrev_b32 v246, 4, {vLane}")
    else: S(f"v_lshlrev_b32 v246, 8, {vN}", f"v_lshl_add_u32 v246, {vG}, 4, v246")
    S(f"v_add_u32 {vKA}, s7, v246", f"v_add_u32 {vKB}, s9, v246",
      f"v_lshl_add_u32 v246, {vG}, 10, v247", f"v_add_u32 {vVA}, s7, v246", f"v_add_u32 {vVB}, s9, v246")
    for (d, s) in ((52,28),(44,18),(48,20),(56,30)):
        S(f"s_mov_b32 s{d}, s{s}", f"s_mov_b32 s{d+1}, s{s+1}", f"s_mov_b32 s{d+2}, 33554432", f"s_mov_b32 s{d+3}, 0x00020000")
    for j in range(1, 4): I(f"s_mov_b32 s{95+j}, {4096*j}")
    if opt.get("b1", 1): I("s_barrier")
    def loadK(j):
        for st in range(4):
            ko = (1024 if klds else 64) * st
            if j == 0: I(f"buffer_load_dwordx4 {vr(KR+4*st)}, {vKB}, {sKB}, 0 offen offset:{ko} nt", "K0")
            else:
                so = "0" if j == 1 else f"s{94+j}"
                I(f"buffer_load_dwordx4 {vr(KR+16*j+4*st)}, {vKA}, {sKA}, {so} offen offset:{ko} nt", f"K{j}")
    def loadV(j):
        for t in range(4):
            if j == 0: I(f"buffer_load_dwordx4 {vr(VR+4*t)}, {vVB}, {sVB}, 0 offen offset:{256*t} nt", "V0")
            else:
                so = "0" if j == 1 else f"s{94+j}"
                I(f"buffer_load_dwordx4 {vr(VR+16*j+4*t)}, {vVA}, {sVA}, {so} offen offset:{256*t} nt", f"V{j}")
    WO = 48
    def loadWO(u):
        for t in range(4):
            I(f"buffer_load_dwordx4 {vr(WO+16*u+4*t)}, {vWO}, {sWO}, s{88+4*u+t} offen nt", f"wo{u}")
    npre = opt.get("npre", 1)
    for j in range(npre): loadK(j)
    S("s_cmp_ge_u32 s14, 16", "s_cselect_b32 s64, s34, s24", "s_cselect_b32 s65, s35, s25", "s_mov_b32 s66, 8388608", "s_mov_b32 s67, 0x00020000")
    S("s_and_b32 s6, s14, 15", "s_lshl_b32 s6, s6, 8", "s_add_u32 s6, s6, s11", "s_lshl_b32 s6, s6, 11", "s_lshl_b32 s7, s15, 8", "s_add_u32 s6, s6, s7")
    S(f"v_lshl_add_u32 v246, {vG}, 13, v247", f"v_add_u32 {vWO}, s6, v246")
    for u in range(2):
        for t in range(4): I(f"s_mov_b32 s{88+4*u+t}, {t*2048+u*32768}")
    S("s_mov_b32 s72, s40", "s_mov_b32 s73, s41", "s_mov_b32 s74, 268435456", "s_mov_b32 s75, 0x00020000")
    S("s_mov_b32 s76, s36", "s_mov_b32 s77, s37", "s_mov_b32 s78, 16384", "s_mov_b32 s79, 0x00020000")
    S(f"s_mov_b32 {sP}, s4", f"s_mov_b32 {sS}, s5", f"s_mov_b32 {sBK}, s14", f"s_mov_b32 {sCB}, s15")
    S(f"v_and_b32 v246, 1, {vLane}", "v_cmp_eq_u32 vcc, 0, v246", "v_mov_b32 v246, 0x01000c0c", "v_mov_b32 v247, 0x0c0c0100",
      f"v_cndmask_b32 {vSE}, v246, v247, vcc", "v_mov_b32 v246, 0x03020c0c", "v_mov_b32 v247, 0x0c0c0302", f"v_cndmask_b32 {vSO}, v246, v247, vcc",
      f"v_cmp_eq_u32 vcc, 0, {vXb}", "v_mov_b32 v246, 0x0c0c0c0c",
      f"v_cndmask_b32 {vSE0}, v246, {vSE}, vcc", f"v_cndmask_b32 {vSO0}, v246, {vSO}, vcc",
      f"v_cndmask_b32 {vSE1}, {vSE}, v246, vcc", f"v_cndmask_b32 {vSO1}, {vSO}, v246, vcc")
    for i in range(4): I(f"s_mov_b32 s{8+i}, {0x07060500+i:#x}")
    S("s_mov_b32 s12, 0x0c0c0400", "s_mov_b32 s13, 0x0c040100", "s_mov_b32 s14, 0x04020100", f"s_mov_b32 {sC}, {f32(SCALE)}")
    S(f"v_lshrrev_b32 v246, 1, {vG}", f"v_lshl_add_u32 v246, {sW}, 1, v246", f"v_mul_u32_u24 v246, {RED_STR}, v246",
      f"v_and_b32 v247, 1, {vG}", "v_lshl_add_u32 v246, v247, 10, v246", f"v_lshl_add_u32 {vRW}, {vN}, 5, v246",
      f"v_mul_u32_u24 v246, {4*RED_STR}, {vG}", f"v_lshl_add_u32 v247, {sW}, 4, {vN}", f"v_lshl_add_u32 {vRR}, v247, 4, v246")
    S("s_lshr_b32 s4, s2, 2", "s_and_b32 s4, s4, 31", "s_lshl_b32 s4, s4, 2", f"s_lshr_b32 s5, {sW}, 1", "s_add_u32 s4, s4, s5", f"s_mul_i32 s4, s4, {QP_STR}",
      "s_lshr_b32 s5, s2, 7", "s_lshl_b32 s5, s5, 2", "s_and_b32 s6, s2, 3", "s_add_u32 s5, s5, s6", "s_lshl_b32 s5, s5, 9", "s_add_u32 s4, s4, s5",
      f"s_and_b32 s5, {sW}, 1", "s_lshl_b32 s5, s5, 8", "s_add_u32 s4, s4, s5", f"s_add_u32 s4, s4, {WS_QP}",
      f"v_lshlrev_b32 v246, 4, {vN}", "v_add_u32 v252, s4, v246")
    S(f"s_and_b32 s5, {sP}, 3", "s_lshl_b32 s5, s5, 3", f"s_add_u32 s5, s5, {sW}", "s_lshl_b32 s5, s5, 2",
      f"s_lshr_b32 s4, {sP}, 2", "s_add_u32 s5, s5, s4", f"s_mul_i32 s5, s5, {QP_STR}", f"s_add_u32 s5, s5, {WS_QP}")
    S(f"v_lshlrev_b32 v246, 4, {vLane}", "v_add_u32 v253, s5, v246")
    S("s_waitcnt lgkmcnt(0)", f"s_add_u32 {sEP1}, s42, 1", f"s_mul_i32 {sTAG}, {sEP1}, 0x9e3779b1",
      f"s_lshr_b32 s4, {sTAG}, 15", f"s_xor_b32 {sTAG}, {sTAG}, s4", f"s_mul_i32 {sTAG}, {sTAG}, 0x85ebca6b",
      f"s_lshr_b32 s4, {sTAG}, 13", f"s_xor_b32 {sTAG}, {sTAG}, s4", f"v_mov_b32 {vT}, {sTAG}")
    S("s_getreg_b32 s25, hwreg(HW_REG_XCC_ID)", f"s_mul_i32 s26, {sP}, {XT_STR}", f"s_add_u32 s26, s26, {WS_XT}")
    S(f"s_cmp_lg_u32 {sW}, 0", "s_cbranch_scc1 L_noxt")
    S(f"s_lshl_b32 s4, {sS}, 3", "s_add_u32 s4, s4, s26", "v_mov_b32 v246, s4", f"v_mov_b32 v{SR}, s25", f"v_mov_b32 v{SR+1}, {sTAG}", "s_mov_b64 exec, 1")
    I0(f"buffer_store_dwordx2 {vr(SR,2)}, v246, {sWS}, 0 offen sc1"); A.vm.pop()
    I("s_mov_b64 exec, -1")
    A.label("L_noxt")

    A.wait_vm("x")
    afrags(232, 224)
    for u in range(2):
        A.wait_vm(f"wq{u}"); transpose(WR+16*u); projmm(WR, 224, SR, u)
    stamp("wq arrived")
    write_acc(vRW, SR)
    npre2 = opt.get("npre2", npre)
    for j in range(npre, npre2): loadK(j)
    barrier()
    red_publish(SR, "v252", "qst")
    I("s_barrier")
    stamp("q published")
    for j in range(npre2, 5): loadK(j)
    def gatherQ(tag):
        for i in range(4): I(f"buffer_load_dwordx4 {vr(GR+4*i)}, v253, {sWS}, 0 offen offset:{1024*i} sc1", tag)
    S(f"v_lshlrev_b32 v247, 3, {vN}", "v_add_u32 v247, s26, v247")
    I0(f"buffer_load_dwordx2 {vr(SR,2)}, v247, {sWS}, 0 offen sc1", "G")
    gatherQ("G")
    I("s_barrier")
    nv1 = opt.get("nv1", 1)
    for j in range(nv1): loadV(j)
    S(f"v_lshrrev_b32 v246, 5, {vLane}", f"v_mul_u32_u24 v246, {Q_BS}, v246", f"v_and_b32 v247, 31, {vLane}", "v_lshl_add_u32 v246, v247, 3, v246",
      f"s_mul_i32 s4, {sW}, {Q_HS}", "v_add_u32 v252, s4, v246")
    S(f"v_lshrrev_b32 v247, 1, {vN}", f"v_mul_u32_u24 v247, {Q_HS}, v247", f"v_lshl_add_u32 v254, {vG}, 4, v247")
    if klds:
        S(f"s_lshl_b32 s4, {sW}, 13", f"s_add_u32 s4, s4, {L_OB}")
        for st in range(4):
            S(f"v_add_u32 v246, {4*st}, {vG}", f"v_xor_b32 v247, v246, {vN}", "v_lshlrev_b32 v247, 4, v247")
            I(f"v_lshl_add_u32 v{SR+4+st}, v246, 8, v247")
            I(f"v_lshl_add_u32 v{SR+8+st}, {vN}, 8, v247")
            I(f"v_add_u32 v{SR+4+st}, s4, v{SR+4+st}"); I(f"v_add_u32 v{SR+8+st}, s4, v{SR+8+st}")
        for j in range(5):
            A.wait_vm(f"K{j}")
            for st in range(4): I(f"ds_write_b128 v{SR+4+st}, {vr(KR+16*j+4*st)} offset:{4096*(j&1)}")
            for st in range(4): I(f"ds_read_b128 {vr(KR+16*j+4*st)}, v{SR+8+st} offset:{4096*(j&1)}")
            if j in (1, 3): I("s_waitcnt lgkmcnt(4)")
    I("s_mov_b32 s15, 0")
    A.wait_vm("G")
    stamp("G arrived")
    S(f"v_cmp_ne_u32 s[6:7], s25, v{SR}", f"v_cmp_ne_u32 vcc, {vT}, v{SR+1}", "s_or_b64 s[6:7], s[6:7], vcc", "s_cmp_eq_u64 s[6:7], 0", "s_cselect_b32 s22, 1, 0")
    if opt.get("noloc"): I("s_mov_b32 s22, 0")
    A.label("L_qchk")
    for i in range(4): chk4(GR+4*i, "v246", i == 0)
    if opt.get("noq"): I("s_mov_b64 s[6:7], 0")
    S("s_cmp_eq_u64 s[6:7], 0", "s_cbranch_scc1 L_qok", "s_add_u32 s15, s15, 1", "s_cmp_gt_u32 s15, 20000", "s_cbranch_scc1 L_qok")
    nvm = len(A.vm)
    gatherQ("G2")
    S("s_waitcnt vmcnt(0)", "s_branch L_qchk")
    del A.vm[nvm:]
    A.label("L_qok")
    stamp("G ok")
    for j in range(0, 4, 2):
        I(f"v_pk_add_f32 {vr(GR+j,2)}, {vr(GR+j,2)}, {vr(GR+4+j,2)}")
        I(f"v_pk_add_f32 {vr(GR+8+j,2)}, {vr(GR+8+j,2)}, {vr(GR+12+j,2)}")
    for j in range(4): I(f"v_permlane32_swap_b32 v{GR+j}, v{GR+8+j}")
    for j in range(0, 4, 2): I(f"v_pk_add_f32 {vr(GR+j,2)}, {vr(GR+j,2)}, {vr(GR+8+j,2)}")
    S(f"v_cvt_pk_bf16_f32 v{GR}, v{GR}, v{GR+1}", f"v_cvt_pk_bf16_f32 v{GR+1}, v{GR+2}, v{GR+3}")
    I(f"ds_write_b64 v252, {vr(GR,2)} offset:{L_Q}")
    barrier()
    QA, QB = WR, WR+16
    for st in range(4): I(f"ds_read_b128 {vr(QB+4*st)}, v254 offset:{L_Q+Q_BS+64*st}")
    for st in range(4): I(f"ds_read_b128 {vr(QA+4*st)}, v254 offset:{L_Q+64*st}")
    S(f"v_lshrrev_b32 v246, 5, {vLane}", f"v_lshl_add_u32 v246, v246, 4, {vN}", "v_lshlrev_b32 v246, 5, v246",
      f"v_lshl_add_u32 v253, {sW}, 2, v246", f"v_lshlrev_b32 v252, 5, {vN}")
    I("s_waitcnt lgkmcnt(0)")
    for st in range(4):
        for j in range(5):
            q = QB if j == 0 else QA
            c = "0" if st == 0 else vr(SR+4*j)
            I(f"v_mfma_f32_16x16x32_bf16 {vr(SR+4*j)}, {vr(KR+16*j+4*st)}, {vr(q+4*st)}, {c}")
    nvq = opt.get("nvq", 2)
    for u in range(opt.get("woearly", 0)): loadWO(u)
    for j in range(nv1, nvq): loadV(j)
    stamp("QK done")
    TM = 80
    mA, mB = f"v{TM}", f"v{TM+1}"
    S(f"v_max3_f32 {mB}, v{SR}, v{SR+1}, v{SR+2}", f"v_max_f32 {mB}, {mB}, v{SR+3}", f"v_max3_f32 {mA}, v{SR+4}, v{SR+5}, v{SR+6}")
    for k in range(SR+7, SR+19, 2): I(f"v_max3_f32 {mA}, {mA}, v{k}, v{k+1}")
    I(f"v_max_f32 {mA}, {mA}, v{SR+19}")
    def xreduce(a, b, op, t):
        S(f"v_permlane32_swap_b32 {a}, {b}", f"{op} {a}, {a}, {b}", f"v_mov_b32 {t}, {a}", f"v_permlane16_swap_b32 {a}, {t}", f"{op} {a}, {a}, {t}")
    xreduce(mA, mB, "v_max_f32", f"v{TM+2}")
    I(f"ds_write_b32 v253, {mA} offset:{L_MX}")
    barrier()
    R = WR
    for k in range(4): I(f"ds_read_b128 {vr(R+4*k)}, v252 offset:{L_MX+(k>>1)*512+(k&1)*16}")
    I("s_waitcnt lgkmcnt(0)")
    for (m, b) in ((mA, R), (mB, R+8)):
        S(f"v_max3_f32 {m}, v{b}, v{b+1}, v{b+2}", f"v_max3_f32 {m}, {m}, v{b+3}, v{b+4}", f"v_max3_f32 {m}, {m}, v{b+5}, v{b+6}", f"v_max_f32 {m}, {m}, v{b+7}")
    S(f"v_mul_f32 {mA}, {sC}, {mA}", f"v_mul_f32 {mB}, {sC}, {mB}")
    for k in range(20):
        I(f"v_fma_f32 v{SR+k}, v{SR+k}, {sC}, -{mB if k < 4 else mA}")
    for k in range(20): I(f"v_exp_f32 v{SR+k}, v{SR+k}")
    lA, lB = f"v{TM+4}", f"v{TM+5}"
    S(f"v_add_f32 {lB}, v{SR}, v{SR+1}", f"v_add_f32 {lB}, {lB}, v{SR+2}", f"v_add_f32 {lB}, {lB}, v{SR+3}", f"v_add_f32 {lA}, v{SR+4}, v{SR+5}")
    for k in range(6, 20): I(f"v_add_f32 {lA}, {lA}, v{SR+k}")
    xreduce(lA, lB, "v_add_f32", f"v{TM+2}")
    I(f"ds_write_b32 v253, {lA} offset:{L_LS}")
    S(f"s_lshl_b32 s4, {sW}, 1", f"v_readlane_b32 s42, {mA}, s4", f"v_readlane_b32 s43, {mB}, s4")
    for j in range(5):
        b = SR+4*j
        S(f"v_cvt_pk_bf16_f32 v{TM+6}, v{b}, v{b+1}", f"v_cvt_pk_bf16_f32 v{TM+7}, v{b+2}, v{b+3}",
          f"v_perm_b32 v{b}, v{TM+6}, v{TM+6}, {vSE}", f"v_perm_b32 v{b+1}, v{TM+6}, v{TM+6}, {vSO}",
          f"v_perm_b32 v{b+2}, v{TM+7}, v{TM+7}, {vSE}", f"v_perm_b32 v{b+3}, v{TM+7}, v{TM+7}, {vSO}")
    stamp("softmax done")
    nv2 = opt.get("nv2", 4)
    for j in range(nvq, nv2): loadV(j)
    OA, OB = 16, 32
    def pv(j, O, first):
        A.wait_vm(f"V{j}")
        transpose(VR+16*j)
        for r in range(4):
            c = "0" if first else vr(O+4*r)
            I(f"v_mfma_f32_16x16x32_bf16 {vr(O+4*r)}, {vr(SR+4*j)}, {vr(VR+16*j+4*r)}, {c}")
    vOW, vOR, vOS, vLSs, vLSr = [f"v{TM+8+i}" for i in range(5)]
    S(f"s_mul_i32 s4, {sW}, {O_STR}", f"v_lshlrev_b32 v246, 10, {vG}", f"v_lshl_add_u32 v246, {vN}, 5, v246", f"v_add_u32 {vOW}, s4, v246",
      f"v_lshrrev_b32 v246, 5, {vLane}", f"v_mul_u32_u24 v246, {4*O_STR}, v246", f"v_and_b32 v247, 31, {vLane}", f"v_lshl_add_u32 v247, {sW}, 5, v247", f"v_lshl_add_u32 {vOR}, v247, 4, v246")
    S(f"s_lshl_b32 s5, {sP}, 17", f"s_lshl_b32 s6, {sW}, 13", "s_add_u32 s5, s5, s6", f"s_lshl_b32 s7, {sS}, 8", "s_add_u32 s5, s5, s7", f"s_add_u32 s5, s5, {WS_OP}")
    S(f"v_and_b32 v246, 1, {vG}", "v_lshlrev_b32 v246, 12, v246", f"v_lshl_add_u32 v246, {vN}, 4, v246", f"v_add_u32 {vOS}, s5, v246")
    S(f"s_lshl_b32 s5, {sP}, 4", f"s_add_u32 s5, s5, {sW}", f"s_mul_i32 s5, s5, {LSE_STR}", f"s_lshl_b32 s7, {sS}, 3", "s_add_u32 s5, s5, s7",
      f"s_add_u32 s5, s5, {WS_LSE}", f"v_mov_b32 {vLSs}, s5", f"s_lshl_b32 s4, {sW}, 6", f"v_mov_b32 {vLSr}, s4",
      "s_mov_b32 s20, 65536", f"s_mov_b32 s21, {8*LSE_STR}")
    def publishO(br, O, Lb):
        I(f"v_add_u32 v246, {Lb}, {vOW}")
        write_acc("v246", O)
        I(f"v_add_u32 v247, {Lb}, {vOR}")
        if br == 0 and opt.get("wolate", 0) == 5:
            for u in range(opt.get("wosplit", 0)): loadWO(u)
        barrier()
        for j in range(4): I(f"ds_read_b128 {vr(R+4*j)}, v247 offset:{j*O_STR}")
        for k in range(2): I(f"ds_read_b128 {vr(R+16+4*k)}, {vLSr} offset:{L_LS+br*512+16*k}")
        I("s_waitcnt lgkmcnt(0)")
        I(f"v_pk_add_f32 {vr(R+16,2)}, {vr(R+16,2)}, {vr(R+18,2)}")
        I(f"v_pk_add_f32 {vr(R+20,2)}, {vr(R+20,2)}, {vr(R+22,2)}")
        I(f"v_pk_add_f32 {vr(R+16,2)}, {vr(R+16,2)}, {vr(R+20,2)}")
        I(f"v_add_f32 v{R+16}, v{R+16}, v{R+17}")
        S(f"v_rcp_f32 v{R+18}, v{R+16}", f"v_log_f32 v{R+20}, v{R+16}")
        sum4(R)
        S(f"v_add_f32 v{R+20}, s{42+br}, v{R+20}", f"v_mov_b32 v{R+21}, {vT}")
        S(f"v_permlane32_swap_b32 v{R}, v{R+1}", f"v_permlane32_swap_b32 v{R+2}, v{R+3}",
          f"v_add_f32 v{R}, v{R}, v{R+1}", f"v_add_f32 v{R+2}, v{R+2}, v{R+3}",
          f"v_mul_f32 v{R}, v{R}, v{R+18}", f"v_mul_f32 v{R+2}, v{R+2}, v{R+18}",
          f"v_mov_b32 v{R+1}, v{R}", f"v_mov_b32 v{R+3}, v{R+2}",
          f"v_permlane32_swap_b32 v{R}, v{R+1}", f"v_permlane32_swap_b32 v{R+2}, v{R+3}")
        tag4(R)
        lstore([(["s_mov_b32 exec_lo, -1", "s_mov_b32 exec_hi, 0"], f"buffer_store_dwordx4 {vr(R)}, {vOS}, {sWS}, {'0' if br == 0 else 's20'} offen", f"ost{br}"),
                (["s_mov_b64 exec, 1"], f"buffer_store_dwordx2 {vr(R+20,2)}, {vLSs}, {sWS}, {'0' if br == 0 else 's21'} offen", f"ost{br}")])
    pv(0, OB, True)
    publishO(1, OB, L_OB)
    if nv2 < 5: I("s_barrier")
    stamp("B published")
    for j in range(nv2, 5): loadV(j)
    wosplit = opt.get("woearly", 0)
    wolate = 0
    vCS, vOCg = vVB, vWQ
    S(f"s_lshl_b32 s4, {sP}, 1", f"s_and_b32 s5, {sW}, 1", "s_add_u32 s4, s4, s5",
      "s_lshl_b32 s6, s4, 4", f"s_add_u32 s6, s6, {sS}", "s_lshl_b32 s6, s6, 12", f"s_add_u32 s6, s6, {WS_OP}",
      f"v_lshlrev_b32 v246, 4, {vLane}", "v_add_u32 v252, s6, v246",
      "s_lshl_b32 s6, s4, 3", f"s_lshr_b32 s7, {sS}, 1", "s_add_u32 s6, s6, s7", f"s_mul_i32 s6, s6, {LSE_STR}", f"s_add_u32 s6, s6, {WS_LSE}",
      f"v_lshlrev_b32 v246, 3, {vN}", "v_add_u32 v253, s6, v246")
    S("s_lshl_b32 s6, s5, 7", f"s_and_b32 s7, {sP}, 3", "s_lshl_b32 s7, s7, 5", "s_add_u32 s6, s6, s7", f"s_lshl_b32 s7, {sS}, 1", "s_add_u32 s6, s6, s7",
      f"s_mul_i32 s6, s6, {OC_STR}", f"s_lshr_b32 s7, {sP}, 2", "s_lshl_b32 s7, s7, 7", "s_add_u32 s6, s6, s7", f"s_add_u32 s6, s6, {WS_OC}",
      f"v_lshrrev_b32 v246, 3, {vN}", f"v_mul_u32_u24 v246, {OC_STR}, v246", f"v_and_b32 v247, 7, {vN}", "v_lshl_add_u32 v246, v247, 4, v246", f"v_add_u32 {vCS}, s6, v246")
    I(f"v_lshlrev_b32 v254, 2, {vG}")
    S(f"s_lshl_b32 s6, {sBK}, 3", f"s_add_u32 s6, s6, {sW}", f"s_mul_i32 s6, s6, {OC_STR}", f"s_add_u32 s6, s6, {WS_OC}",
      f"v_and_b32 v246, 31, {vLane}", "v_lshlrev_b32 v246, 4, v246", f"v_add_u32 {vOCg}, s6, v246",
      f"v_lshlrev_b32 v246, 5, {vB}", f"v_lshl_add_u32 v246, {vXb}, 4, v246", f"v_lshl_add_u32 {vX}, {vG}, 2, v246")
    vFS, vFG = vKA, vKB
    S(f"s_lshr_b32 s4, {sBK}, 4", "s_lshl_b32 s4, s4, 3", f"s_add_u32 s4, s4, {sCB}", "s_lshl_b32 s4, s4, 4",
      f"s_and_b32 s5, {sBK}, 15", f"s_lshl_b32 s6, {sW}, 1", "s_add_u32 s6, s6, s4", f"s_mul_i32 s6, s6, {FP_STR}",
      "s_lshl_b32 s7, s5, 7", "s_add_u32 s6, s6, s7", f"s_add_u32 s6, s6, {WS_FP}")
    S(f"v_lshrrev_b32 v246, 3, {vN}", f"v_mul_u32_u24 v246, {FP_STR}, v246", f"v_and_b32 v247, 7, {vN}", "v_lshl_add_u32 v246, v247, 4, v246", f"v_add_u32 {vFS}, s6, v246")
    S("s_add_u32 s6, s4, s5", f"s_mul_i32 s6, s6, {FP_STR}", f"s_add_u32 s6, s6, {WS_FP}")
    S(f"v_lshlrev_b32 v246, 4, {vLane}", f"v_add_u32 {vFG}, s6, v246")
    if opt.get("pretouch"):
        pm = opt["pretouch"].replace("_", " ")
        S(f"s_cmp_gt_u32 {sW}, 1", "s_cbranch_scc1 L_npt")
        I0(f"buffer_load_dwordx2 {vr(WO,2)}, v253, {sWS}, 0 offen {pm}"); A.vm.pop()
        for i in range(4):
            I0(f"buffer_load_dwordx4 {vr(WO)}, v252, {sWS}, 0 offen offset:{1024*i} {pm}"); A.vm.pop()
        A.label("L_npt")
    for j in range(1, 5):
        pv(j, OA, j == 1)
        if wolate == j:
            for u in range(wosplit): loadWO(u)
    stamp("PV done")
    DG, LG, TT = 96, 112, 144
    prepoll = opt.get("prepoll", 0)
    if prepoll:
        S(f"s_cmp_gt_u32 {sW}, 1", "s_cbranch_scc1 L_npp")
        I(f"buffer_load_dwordx2 {vr(LG,2)}, v253, {sWS}, 0 offen sc1"); A.vm.pop()
        A.label("L_npp")
    publishO(0, OA, L_OA)
    I("s_barrier")
    stamp("A published")
    DG, LG, TT = 96, 112, 144
    cgm = opt.get("cgm", "sc1_nt").replace("_", " ")
    def cgather():
        I(f"buffer_load_dwordx2 {vr(LG,2)}, v253, {sWS}, 0 offen {cgm}")
        for i in range(4): I(f"buffer_load_dwordx4 {vr(DG+4*i)}, v252, {sWS}, 0 offen offset:{1024*i} {cgm}")
    womid = max(opt.get("womid", 1), wosplit)
    S("s_mov_b32 s23, 0", "s_mov_b32 s24, 0", "s_mov_b32 s15, 0", (f"s_cmp_gt_u32 {sW}, 1" if not opt.get("abl",0)&1 else "s_cmp_eq_u32 s2, s2"), "s_cbranch_scc1 L_cng")
    if prepoll:
        S("s_waitcnt vmcnt(2)", f"v_cmp_ne_u32 vcc, v{LG+1}, {vT}", f"v_cmp_ne_u32 s[6:7], {sS}, {vN}", "s_and_b64 vcc, vcc, s[6:7]",
          "s_mov_b32 s24, 1", "s_cbranch_vccnz L_cng", "s_mov_b32 s24, 0")
    nvm = len(A.vm); cgather(); del A.vm[nvm:]
    A.label("L_cng")
    for u in range(wosplit, womid): loadWO(u)
    S((f"s_cmp_gt_u32 {sW}, 1" if not opt.get("abl",0)&1 else "s_cmp_eq_u32 s2, s2"), "s_cbranch_scc1 L_cskip")
    S("s_cmp_lg_u32 s24, 0", "s_cbranch_scc1 L_cskip")
    I(f"s_waitcnt vmcnt({4*(womid-wosplit)})")
    I("s_branch L_cchk")
    nvm = len(A.vm)
    A.label("L_c")
    S("s_add_u32 s15, s15, 1", "s_cmp_gt_u32 s15, 20000", "s_cbranch_scc1 L_cdo")
    if opt.get("slp", 0): I(f"s_sleep {opt.get('slp', 0)}")
    if not opt.get("fullretry", 1):
        I(f"buffer_load_dwordx2 {vr(LG,2)}, v253, {sWS}, 0 offen sc1")
        S("s_waitcnt vmcnt(0)", f"v_cmp_ne_u32 vcc, v{LG+1}, {vT}", "s_cbranch_vccnz L_c")
    cgather()
    I("s_waitcnt vmcnt(0)")
    A.label("L_cchk")
    for i in range(4): chk4(DG+4*i, "v246", i == 0)
    S(f"v_cmp_ne_u32 vcc, v{LG+1}, {vT}", "s_or_b64 s[6:7], s[6:7], vcc", "s_cmp_eq_u64 s[6:7], 0", "s_cbranch_scc1 L_cdo")
    if not opt.get("cwait", 1): S("s_mov_b32 s24, 1", "s_cmp_eq_u32 s23, 0", "s_cbranch_scc1 L_cskip")
    I("s_branch L_c")
    A.label("L_cdo")
    I(f"v_mov_b32 v{TT}, v{LG}")
    for k in (8, 4, 2, 1): dpp("v_max_f32", TT, f"row_ror:{k}")
    S(f"v_sub_f32 v{LG}, v{LG}, v{TT}", f"v_exp_f32 v{LG}, v{LG}", f"v_mov_b32 v{TT+1}, v{LG}")
    for k in (8, 4, 2, 1): dpp("v_add_f32", TT+1, f"row_ror:{k}")
    S(f"v_rcp_f32 v{TT+1}, v{TT+1}", f"v_mul_f32 v{LG}, v{LG}, v{TT+1}")
    for i in range(4): I(f"ds_bpermute_b32 v{LG+2+i}, v254, v{LG} offset:{16*i}")
    I("s_waitcnt lgkmcnt(0)")
    AC = TT+4
    for j in range(4): I(f"v_mul_f32 v{AC+j}, v{LG+2}, v{DG+j}")
    for i in range(1, 4):
        for j in range(4): I(f"v_fmac_f32 v{AC+j}, v{LG+2+i}, v{DG+4*i+j}")
    xrow(AC)
    tag4(AC)
    I("s_mov_b64 exec, 0xffff")
    I(f"buffer_store_dwordx4 {vr(AC)}, {vCS}, {sWS}, 0 offen sc1")
    S("s_mov_b64 exec, -1", "s_mov_b32 s24, 0", "s_cmp_lg_u32 s23, 0", "s_cbranch_scc1 L_cend")
    del A.vm[nvm:]
    A.label("L_cskip")
    I("s_barrier")
    stamp("C1 done")
    for u in range(womid, 2): loadWO(u)
    S("s_mov_b32 s23, 1", "s_cmp_lg_u32 s24, 0", "s_cbranch_scc1 L_c")
    A.label("L_cend")
    OG = 120
    I(f"buffer_load_dwordx4 {vr(OG)}, {vOCg}, {sWS}, 0 offen sc1", "GO")
    A.wait_vm("wo0"); transpose(WO)
    A.wait_vm("wo1"); transpose(WO+16)
    stamp("wo arrived")
    I("s_mov_b32 s15, 0")
    A.wait_vm("GO")
    A.label("L_ochk")
    chk4(OG, "v246", True)
    if opt.get("abl",0)&2: I("s_mov_b64 s[6:7], 0")
    S("s_cmp_eq_u64 s[6:7], 0", "s_cbranch_scc1 L_ook", "s_add_u32 s15, s15, 1", "s_cmp_gt_u32 s15, 20000", "s_cbranch_scc1 L_ook")
    nvm = len(A.vm)
    if opt.get("slp", 0): I(f"s_sleep {opt.get('slp', 0)}")
    I(f"buffer_load_dwordx4 {vr(OG)}, {vOCg}, {sWS}, 0 offen sc1")
    S("s_waitcnt vmcnt(0)", "s_branch L_ochk")
    del A.vm[nvm:]
    A.label("L_ook")
    stamp("GO ok")
    S(f"v_cvt_pk_bf16_f32 v{TT+10}, v{OG}, v{OG+1}", f"v_cvt_pk_bf16_f32 v{TT+11}, v{OG+2}, v{OG+3}",
      f"ds_bpermute_b32 v{TT+8}, {vX}, v{TT+10}", f"ds_bpermute_b32 v{TT+9}, {vX}, v{TT+11}", "s_waitcnt lgkmcnt(0)")
    afrags(TT+8, 224)
    for u in range(2): projmm(WO, 224, SR, u)
    write_acc(vRW, SR)
    barrier()
    red_publish(SR, vFS, "fst", local=True)
    stamp("F published")
    S(f"s_cmp_lg_u32 {sW}, 0", "s_cbranch_scc1 L_fin")
    S(f"s_and_b32 s4, {sBK}, 15", "s_lshr_b32 s5, s4, 2", "s_lshl_b32 s5, s5, 12", "s_and_b32 s4, s4, 3", "s_lshl_b32 s4, s4, 6", "s_add_u32 s5, s5, s4",
      f"s_lshr_b32 s4, {sBK}, 4", "s_lshl_b32 s4, s4, 11", "s_add_u32 s5, s5, s4", f"s_lshl_b32 s4, {sCB}, 8", "s_add_u32 s5, s5, s4")
    S(f"v_and_b32 v252, 7, {vLane}", "v_lshlrev_b32 v252, 3, v252", f"v_and_b32 v247, 1, {vG}", "v_lshl_add_u32 v252, v247, 2, v252",
      f"v_lshrrev_b32 v247, 1, {vG}", "v_lshl_add_u32 v252, v247, 1, v252", "v_add_u32 v252, s5, v252")
    I("s_mov_b32 s15, 0")
    A.label("L_fl")
    if opt.get("slpf", 0): I(f"s_sleep {opt.get('slpf')}")
    fgm = opt.get("fgm", "sc1_nt").replace("_", " ")
    I(f"buffer_load_dwordx4 {vr(DG)}, {vFG}, {sWS}, 0 offen {fgm}")
    I(f"buffer_load_dwordx4 {vr(DG+4)}, {vFG}, {sWS}, 0 offen offset:1024 {fgm}")
    I("s_waitcnt vmcnt(0)")
    chk4(DG, "v246", True); chk4(DG+4, "v246", False)
    if opt.get("abl",0)&4: I("s_mov_b64 s[6:7], 0")
    S("s_cmp_eq_u64 s[6:7], 0", "s_cbranch_scc1 L_fok", "s_add_u32 s15, s15, 1", "s_cmp_gt_u32 s15, 20000", "s_cbranch_scc0 L_fl")
    A.label("L_fok")
    stamp("F ok")
    S(f"v_pk_add_f32 {vr(DG,2)}, {vr(DG,2)}, {vr(DG+4,2)}", f"v_pk_add_f32 {vr(DG+2,2)}, {vr(DG+2,2)}, {vr(DG+6,2)}",
      f"v_permlane32_swap_b32 v{DG}, v{DG+1}", f"v_permlane32_swap_b32 v{DG+2}, v{DG+3}",
      f"v_add_f32 v{DG}, v{DG}, v{DG+1}", f"v_add_f32 v{DG+2}, v{DG+2}, v{DG+3}",
      f"v_permlane16_swap_b32 v{DG}, v{DG+2}", f"v_add_f32 v{DG}, v{DG}, v{DG+2}")
    dpp("v_add_f32", DG, "row_ror:8")
    I(f"v_cvt_pk_bf16_f32 v{DG}, v{DG}, v{DG}")
    S("s_mov_b32 exec_lo, 0x00ff00ff", "s_mov_b32 exec_hi, 0x00ff00ff")
    I(f"buffer_store_short v{DG}, v252, {sOUT}, 0 offen")
    S("s_mov_b64 exec, -1", "s_cmp_lg_u32 s2, 0", "s_cbranch_scc1 L_fin")
    S("v_mov_b32 v246, 0", f"v_mov_b32 v247, {sEP1}", "s_mov_b64 exec, 1")
    I(f"buffer_store_dword v247, v246, {sWS}, 0 offen")
    I("s_mov_b64 exec, -1")
    A.label("L_fin")
    if ts and opt.get("dbg"):
        nts[0] = 14; stamp("end")
        S(f"v_readlane_b32 s4, {vTS}, 0", "s_not_b32 s4, s4", f"v_writelane_b32 {vTS}, s4, 15")
        S("s_mov_b32 s20, s38", "s_mov_b32 s21, s39", "s_mov_b32 s22, 256", "s_mov_b32 s23, 0x00020000")
        S(f"v_lshlrev_b32 v246, 2, {vLane}", "s_mov_b64 exec, 0xffff")
        I(f"buffer_atomic_umax {vTS}, v246, s[20:23], 0 offen")
    elif ts:
        nts[0] = 31; stamp("end")
        S("s_lshl_b32 s4, s2, 3", f"s_add_u32 s4, s4, {sW}", "s_lshl_b32 s4, s4, 7", f"s_add_u32 s4, s4, {WS_TS}",
          f"v_lshlrev_b32 v246, 2, {vLane}", "v_add_u32 v246, s4, v246", "s_mov_b32 exec_lo, -1", "s_mov_b32 exec_hi, 0")
        I(f"buffer_store_dword {vTS}, v246, {sWS}, 0 offen")
    A.raw("L_end:")
    I("s_endpgm")
    A.raw(f""".section .rodata,"a"
.p2align 6
.amdhsa_kernel {NAME}_kernel
  .amdhsa_next_free_vgpr 256
  .amdhsa_next_free_sgpr 102
  .amdhsa_accum_offset 256
  .amdhsa_group_segment_fixed_size 0
  .amdhsa_kernarg_size 104
  .amdhsa_user_sgpr_count 2
  .amdhsa_user_sgpr_kernarg_segment_ptr 1
  .amdhsa_system_sgpr_workgroup_id_x 1
.end_amdhsa_kernel""")
    return A.text()

if __name__ == "__main__":
    ts = "--ts" in sys.argv
    out = sys.argv[1]
    opt = {}
    for a in sys.argv[2:]:
        if "=" in a:
            k, v = a.split("="); opt[k] = int(v) if v.isdigit() else v
    open(out, "w").write(gen(ts=ts, opt=opt))
```

```python
import sys, struct
sys.path.insert(0, "dev")
from asmlib import Asm
NAME = "concat_heads__gqa_block_cached__sliding_block_cached__decode"
HEADER = open("cdna_kernels/" + NAME + ".s.ref").read().split("; Override launch geometry")[0]

WS_OP = 0x200000; WS_QP = 0x400000; WS_LSE = 0x700000; WS_FP = 0xA00000; WS_OC = 0xD00000; WS_XT = 0x1000; WS_TS = 0x1000000
QP_STR = 0x5000; LSE_STR = 0x2100; FP_STR = 0x2800; OC_STR = 0x2200; XT_STR = 0x2100
L_RED = 0; RED_STR = 2048
L_Q = 33024; Q_HS = 272; Q_BS = 2176
L_MX = 37376; L_LS = 38400
L_OB = 39424; L_OA = 72448; O_STR = 4128
LDS_BYTES = 105472
SCALE = (128 ** -0.5) * 1.4426950408889634
def f32(x): return "0x%08x" % struct.unpack("<I", struct.pack("<f", x))[0]

sKA, sVA, sKB, sVB, sWQ, sWO, sX, sWS, sOUT = [f"s[{44+4*i}:{47+4*i}]" for i in range(9)]
sW = "s3"
sP, sS, sBK, sCB = "s16", "s17", "s18", "s19"
sTAG = "s99"; sEP1 = "s100"; sC = "s101"
vLane, vG, vN = "v1", "v2", "v3"
vKA, vKB, vVA, vVB, vWQ, vWO, vX = "v4", "v5", "v6", "v7", "v8", "v9", "v10"
vSE, vSO, vSE0, vSO0, vSE1, vSO1 = "v11", "v12", "v13", "v14", "v15", "v244"
vT = "v245"; vB = "v248"; vXb = "v249"; vRW = "v250"; vRR = "v251"; vTS = "v255"
KR, VR, WR, SR, GR = 16, 96, 176, 208, 228
def vr(b, n=4): return f"v[{b}:{b+n-1}]"

def gen(ts=False, opt=None):
    opt = opt or {}
    xcd = opt.get("xcd", 1)
    A = Asm(); I0 = A.I
    def I(text, tag=None):
        if opt.get("noq") and tag == "qst" and opt["noq"] & 1: return I0("s_nop 0")
        if opt.get("noq") and tag in ("G", "G2") and "x4" in text and opt["noq"] & 2: return I0("s_nop 0")
        if opt.get("gnt") and text.startswith("buffer_load") and text.endswith("sc1"):
            isq = tag in ("G", "G2")
            if (isq and opt["gnt"] & 1) or (not isq and opt["gnt"] & 2): text += " nt"
        return I0(text, tag)
    def S(*lines):
        for l in lines: I(l)
    nts = [0]
    def stamp(name=""):
        if not ts: return
        k = nts[0]; nts[0] += 1
        assert k < 32
        S("s_memrealtime s[4:5]", "s_waitcnt lgkmcnt(0)", f"v_writelane_b32 {vTS}, s4, {k}")
    def transpose(b):
        for (x, y) in ((1,4),(2,8),(3,12),(6,9),(7,13),(11,14)):
            I(f"v_swap_b32 v{b+x}, v{b+y}")
    def tag4(b):
        for i in range(4): I(f"v_perm_b32 v{b+i}, v{b+i}, {vT}, s{8+i}")
    def chk4(b, tmp, first):
        I(f"v_perm_b32 {tmp}, v{b+1}, v{b}, s12")
        I(f"v_perm_b32 {tmp}, v{b+2}, {tmp}, s13")
        I(f"v_perm_b32 {tmp}, v{b+3}, {tmp}, s14")
        if first: I(f"v_cmp_ne_u32 s[6:7], {tmp}, {vT}")
        else: S(f"v_cmp_ne_u32 vcc, {tmp}, {vT}", "s_or_b64 s[6:7], s[6:7], vcc")
    def write_acc(vaddr, d):
        I(f"v_xor_b32 v243, 16, {vaddr}")
        I(f"ds_write2_b64 {vaddr}, {vr(d,2)}, {vr(d+4,2)} offset0:0 offset1:1")
        I(f"ds_write2_b64 {vaddr}, {vr(d+2,2)}, {vr(d+6,2)} offset0:64 offset1:65")
        I(f"ds_write2_b64 v243, {vr(d+8,2)}, {vr(d+12,2)} offset0:0 offset1:1")
        I(f"ds_write2_b64 v243, {vr(d+10,2)}, {vr(d+14,2)} offset0:64 offset1:65")
    def barrier():
        S("s_waitcnt lgkmcnt(0)", "s_barrier")
    def sum4(D):
        I(f"v_pk_add_f32 {vr(D,2)}, {vr(D,2)}, {vr(D+4,2)}")
        I(f"v_pk_add_f32 {vr(D+2,2)}, {vr(D+2,2)}, {vr(D+6,2)}")
        I(f"v_pk_add_f32 {vr(D+8,2)}, {vr(D+8,2)}, {vr(D+12,2)}")
        I(f"v_pk_add_f32 {vr(D+10,2)}, {vr(D+10,2)}, {vr(D+14,2)}")
        I(f"v_pk_add_f32 {vr(D,2)}, {vr(D,2)}, {vr(D+8,2)}")
        I(f"v_pk_add_f32 {vr(D+2,2)}, {vr(D+2,2)}, {vr(D+10,2)}")
    def dpp(op, r, ctl): I(f"{op}_dpp v{r}, v{r}, v{r} {ctl} row_mask:0xf bank_mask:0xf")
    def afrags(xb, af):
        for u, (se, so) in enumerate(((vSE0, vSO0), (vSE1, vSO1))):
            I(f"v_perm_b32 v{af+4*u+0}, v{xb}, v{xb}, {se}")
            I(f"v_perm_b32 v{af+4*u+1}, v{xb}, v{xb}, {so}")
            I(f"v_perm_b32 v{af+4*u+2}, v{xb+1}, v{xb+1}, {se}")
            I(f"v_perm_b32 v{af+4*u+3}, v{xb+1}, v{xb+1}, {so}")
    def projmm(Wb, af, D, u):
        for r in range(4):
            c = "0" if u == 0 else vr(D+4*r)
            I(f"v_mfma_f32_16x16x32_bf16 {vr(D+4*r)}, {vr(af+4*u)}, {vr(Wb+16*u+4*r)}, {c}")
    nlab = [0]
    def lstore(stores):
        n = nlab[0]; nlab[0] += 1
        S("s_cmp_lg_u32 s22, 0", f"s_cbranch_scc1 L_sl{n}")
        for pre, txt, tag in stores:
            S(*pre); I(txt + " sc1", tag)
        I(f"s_branch L_sd{n}")
        A.label(f"L_sl{n}")
        for pre, txt, tag in stores:
            S(*pre); I(txt, tag); A.vm.pop()
        A.label(f"L_sd{n}")
        I("s_mov_b64 exec, -1")
    def xrow(D):
        a0, a1, a2, a3 = [f"v{D+j}" for j in range(4)]
        S(f"v_permlane32_swap_b32 {a0}, {a2}", f"v_permlane32_swap_b32 {a1}, {a3}",
          f"v_add_f32 {a0}, {a0}, {a2}", f"v_add_f32 {a1}, {a1}, {a3}",
          f"v_permlane16_swap_b32 {a0}, {a1}", f"v_add_f32 {a0}, {a0}, {a1}",
          f"v_mov_b32 {a1}, {a0}", f"v_permlane16_swap_b32 {a0}, {a1}",
          f"v_mov_b32 {a2}, {a0}", f"v_mov_b32 {a3}, {a1}",
          f"v_permlane32_swap_b32 {a0}, {a2}", f"v_permlane32_swap_b32 {a1}, {a3}")
    def red_publish(D, vaddr, tag, local=False):
        for j in range(4): I(f"ds_read_b128 {vr(D+4*j)}, {vRR} offset:{L_RED+j*RED_STR}")
        I("s_waitcnt lgkmcnt(0)")
        sum4(D)
        xrow(D)
        tag4(D)
        if local:
            lstore([(["s_mov_b64 exec, 0xffff"], f"buffer_store_dwordx4 {vr(D)}, {vaddr}, {sWS}, 0 offen", tag)])
        else:
            S("s_mov_b64 exec, 0xffff")
            I(f"buffer_store_dwordx4 {vr(D)}, {vaddr}, {sWS}, 0 offen sc1", tag)
            I("s_mov_b64 exec, -1")

    A.raw(HEADER.rstrip())
    A.raw(f"; @launch grid=(256,1,1) block=(512,1,1) lds={LDS_BYTES}")
    A.raw('.amdgcn_target "amdgcn-amd-amdhsa--gfx950"\n.text')
    A.raw(f".globl {NAME}_kernel\n.p2align 8\n.type {NAME}_kernel,@function\n{NAME}_kernel:")
    S("s_cmp_ge_u32 s2, 256", "s_cbranch_scc1 L_end")
    S("s_load_dwordx16 s[16:31], s[0:1], 0", "s_load_dwordx8 s[32:39], s[0:1], 64", "s_load_dwordx2 s[40:41], s[0:1], 96")
    if ts: I(f"v_mov_b32 {vTS}, 0")
    stamp("start")
    S("v_lshrrev_b32 v246, 6, v0", f"v_and_b32 {vLane}, 63, v0", f"v_readfirstlane_b32 {sW}, v246",
      f"v_lshrrev_b32 {vG}, 4, {vLane}", f"v_and_b32 {vN}, 15, {vLane}", f"v_lshlrev_b32 v247, 4, {vN}")
    ks2 = opt.get("ks2", 1)
    if opt.get("qperm", 0):
        S("s_and_b32 s43, s2, 0x81", "s_bfe_u32 s10, s2, 0x40003", "s_lshl_b32 s10, s10, 1", "s_or_b32 s43, s43, s10",
          "s_bfe_u32 s10, s2, 0x20001", "s_lshl_b32 s10, s10, 5", "s_or_b32 s43, s43, s10")
    else: I(f"s_xor_b32 s43, s2, {opt.get('qx', 0)}")
    if ks2:
        rot = opt.get("rot", 0)
        if rot: S(f"s_lshr_b32 s11, s43, {rot}", f"s_add_u32 s11, s11, {sW}", "s_and_b32 s11, s11, 7", "s_lshl_b32 s11, s11, 6")
        else: I(f"s_lshl_b32 s11, {sW}, 6")
        S("s_and_b32 s10, s43, 1", "s_lshl_b32 s10, s10, 9", "s_add_u32 s10, s10, s11", f"s_lshl_b32 s11, {sW}, 5",
          "s_lshl_b32 s12, s10, 13", "s_bfe_u32 s13, s43, 0x60001", "s_lshl_b32 s13, s13, 7", "s_add_u32 s12, s12, s13")
        S(f"v_lshrrev_b32 v246, 3, {vN}", "v_lshlrev_b32 v246, 17, v246", f"v_lshl_add_u32 v246, {vG}, 15, v246", f"v_and_b32 v248, 7, {vN}",
          "v_lshl_add_u32 v246, v248, 4, v246", f"v_add_u32 {vWQ}, s12, v246")
    else:
        S("s_and_b32 s10, s2, 3", "s_lshl_b32 s10, s10, 8", f"s_lshl_b32 s11, {sW}, 5", "s_add_u32 s10, s10, s11",
          "s_lshl_b32 s12, s10, 13", "s_lshr_b32 s13, s2, 2", "s_and_b32 s13, s13, 31", "s_lshl_b32 s13, s13, 8", "s_add_u32 s12, s12, s13")
        S(f"v_lshl_add_u32 v246, {vG}, 15, v247", f"v_add_u32 {vWQ}, s12, v246")
    S(f"v_bfe_u32 {vB}, {vLane}, 1, 2", f"v_bfe_u32 {vXb}, {vLane}, 3, 1", f"v_lshlrev_b32 v246, 11, {vB}",
      f"v_lshl_add_u32 v246, {vXb}, 5, v246", f"v_lshl_add_u32 v246, {vG}, 3, v246", "s_lshl_b32 s10, s10, 1", f"v_add_u32 {vX}, s10, v246")
    for u in range(2):
        for t in range(4): I(f"s_mov_b32 s{80+4*u+t}, {t*8192+u*(262144 if ks2 else 131072)}")
    S("s_mov_b32 s62, 8388608", "s_mov_b32 s63, 0x00020000", "s_mov_b32 s70, 8192", "s_mov_b32 s71, 0x00020000")
    if xcd: S("s_and_b32 s4, s2, 7", "s_lshl_b32 s4, s4, 1", "s_bfe_u32 s5, s2, 0x10003", "s_add_u32 s4, s4, s5", "s_lshr_b32 s5, s2, 4")
    else: S("s_lshr_b32 s4, s2, 4", "s_and_b32 s5, s2, 15")
    S("s_lshr_b32 s14, s4, 3", "s_lshl_b32 s14, s14, 4", "s_add_u32 s14, s14, s5", "s_and_b32 s15, s4, 7")
    S("s_cmp_ge_u32 s43, 128", "s_waitcnt lgkmcnt(0)")
    S("s_cselect_b32 s60, s32, s22", "s_cselect_b32 s61, s33, s23", "s_cselect_b32 s68, s26, s16", "s_cselect_b32 s69, s27, s17")
    I(f"buffer_load_dwordx2 v[232:233], {vX}, {sX}, 0 offen", "x")
    if ks2: I(f"buffer_load_dwordx2 v[234:235], {vX}, {sX}, 0 offen offset:64", "x")
    for u in range(2):
        for t in range(4):
            I(f"buffer_load_dwordx4 {vr(WR+16*u+4*t)}, {vWQ}, {sWQ}, s{80+4*u+t} offen nt", f"wq{u}")
    I("s_load_dword s42, s[40:41], 0")
    S("s_lshl_b32 s6, s4, 21", "s_lshl_b32 s7, s5, 17", "s_add_u32 s7, s7, s6", f"s_lshl_b32 s8, {sW}, 14", "s_add_u32 s7, s7, s8",
      "s_lshl_b32 s9, s5, 15", "s_add_u32 s9, s9, s6", f"s_lshl_b32 s8, {sW}, 12", "s_add_u32 s9, s9, s8", f"s_add_u32 s9, s9, {6144*256}")
    klds = opt.get("klds", 1)
    if klds: S(f"v_lshlrev_b32 v246, 4, {vLane}")
    else: S(f"v_lshlrev_b32 v246, 8, {vN}", f"v_lshl_add_u32 v246, {vG}, 4, v246")
    S(f"v_add_u32 {vKA}, s7, v246", f"v_add_u32 {vKB}, s9, v246",
      f"v_lshl_add_u32 v246, {vG}, 10, v247", f"v_add_u32 {vVA}, s7, v246", f"v_add_u32 {vVB}, s9, v246")
    for (d, s) in ((52,28),(44,18),(48,20),(56,30)):
        S(f"s_mov_b32 s{d}, s{s}", f"s_mov_b32 s{d+1}, s{s+1}", f"s_mov_b32 s{d+2}, 33554432", f"s_mov_b32 s{d+3}, 0x00020000")
    for j in range(1, 4): I(f"s_mov_b32 s{95+j}, {4096*j}")
    if opt.get("b1", 1): I("s_barrier")
    def loadK(j):
        for st in range(4):
            ko = (1024 if klds else 64) * st
            if j == 0: I(f"buffer_load_dwordx4 {vr(KR+4*st)}, {vKB}, {sKB}, 0 offen offset:{ko} nt", "K0")
            else:
                so = "0" if j == 1 else f"s{94+j}"
                I(f"buffer_load_dwordx4 {vr(KR+16*j+4*st)}, {vKA}, {sKA}, {so} offen offset:{ko} nt", f"K{j}")
    def loadV(j):
        for t in range(4):
            if j == 0: I(f"buffer_load_dwordx4 {vr(VR+4*t)}, {vVB}, {sVB}, 0 offen offset:{256*t} nt", "V0")
            else:
                so = "0" if j == 1 else f"s{94+j}"
                I(f"buffer_load_dwordx4 {vr(VR+16*j+4*t)}, {vVA}, {sVA}, {so} offen offset:{256*t} nt", f"V{j}")
    WO = 48
    def loadWO(u):
        for t in range(4):
            I(f"buffer_load_dwordx4 {vr(WO+16*u+4*t)}, {vWO}, {sWO}, s{88+4*u+t} offen nt", f"wo{u}")
    npre = opt.get("npre", 1)
    for j in range(npre): loadK(j)
    S("s_cmp_ge_u32 s14, 16", "s_cselect_b32 s64, s34, s24", "s_cselect_b32 s65, s35, s25", "s_mov_b32 s66, 8388608", "s_mov_b32 s67, 0x00020000")
    S("s_and_b32 s6, s14, 15", "s_lshl_b32 s6, s6, 8", "s_add_u32 s6, s6, s11", "s_lshl_b32 s6, s6, 11", "s_lshl_b32 s7, s15, 8", "s_add_u32 s6, s6, s7")
    S(f"v_lshl_add_u32 v246, {vG}, 13, v247", f"v_add_u32 {vWO}, s6, v246")
    for u in range(2):
        for t in range(4): I(f"s_mov_b32 s{88+4*u+t}, {t*2048+u*32768}")
    S("s_mov_b32 s72, s40", "s_mov_b32 s73, s41", "s_mov_b32 s74, 268435456", "s_mov_b32 s75, 0x00020000")
    S("s_mov_b32 s76, s36", "s_mov_b32 s77, s37", "s_mov_b32 s78, 16384", "s_mov_b32 s79, 0x00020000")
    S(f"s_mov_b32 {sP}, s4", f"s_mov_b32 {sS}, s5", f"s_mov_b32 {sBK}, s14", f"s_mov_b32 {sCB}, s15")
    S(f"v_and_b32 v246, 1, {vLane}", "v_cmp_eq_u32 vcc, 0, v246", "v_mov_b32 v246, 0x01000c0c", "v_mov_b32 v247, 0x0c0c0100",
      f"v_cndmask_b32 {vSE}, v246, v247, vcc", "v_mov_b32 v246, 0x03020c0c", "v_mov_b32 v247, 0x0c0c0302", f"v_cndmask_b32 {vSO}, v246, v247, vcc",
      f"v_cmp_eq_u32 vcc, 0, {vXb}", "v_mov_b32 v246, 0x0c0c0c0c",
      f"v_cndmask_b32 {vSE0}, v246, {vSE}, vcc", f"v_cndmask_b32 {vSO0}, v246, {vSO}, vcc",
      f"v_cndmask_b32 {vSE1}, {vSE}, v246, vcc", f"v_cndmask_b32 {vSO1}, {vSO}, v246, vcc")
    for i in range(4): I(f"s_mov_b32 s{8+i}, {0x07060500+i:#x}")
    S("s_mov_b32 s12, 0x0c0c0400", "s_mov_b32 s13, 0x0c040100", "s_mov_b32 s14, 0x04020100", f"s_mov_b32 {sC}, {f32(SCALE)}")
    S(f"v_lshrrev_b32 v246, 1, {vG}", f"v_lshl_add_u32 v246, {sW}, 1, v246", f"v_mul_u32_u24 v246, {RED_STR}, v246",
      f"v_and_b32 v247, 1, {vG}", "v_lshl_add_u32 v246, v247, 10, v246", f"v_lshl_add_u32 {vRW}, {vN}, 5, v246",
      f"v_bfe_u32 v247, {vN}, 2, 1", f"v_lshl_add_u32 {vRW}, v247, 4, {vRW}",
      f"v_lshrrev_b32 v247, 3, {vN}", f"v_xor_b32 v247, v247, {vN}",
      f"v_mul_u32_u24 v246, {4*RED_STR}, {vG}", f"v_lshl_add_u32 v247, {sW}, 4, v247", f"v_lshl_add_u32 {vRR}, v247, 4, v246")
    if ks2:
        S("s_lshr_b32 s4, s43, 2", "s_and_b32 s4, s4, 31", "s_lshl_b32 s4, s4, 2", f"s_lshr_b32 s5, {sW}, 1", "s_add_u32 s4, s4, s5", f"s_mul_i32 s4, s4, {QP_STR}",
          "s_lshr_b32 s5, s43, 7", "s_lshl_b32 s5, s5, 10", "s_add_u32 s4, s4, s5", "s_and_b32 s5, s43, 1", "s_lshl_b32 s5, s5, 9", "s_add_u32 s4, s4, s5",
          "s_and_b32 s5, s43, 2", "s_lshl_b32 s5, s5, 7", "s_add_u32 s4, s4, s5",
          f"s_and_b32 s5, {sW}, 1", "s_lshl_b32 s6, s5, 7", "s_add_u32 s4, s4, s6", f"s_add_u32 s4, s4, {WS_QP}",
          f"v_and_b32 v247, 7, {vLane}", "v_lshlrev_b32 v246, 4, v247", "v_add_u32 v252, s4, v246")
        S(f"v_lshrrev_b32 v246, 1, {vG}", f"v_lshl_add_u32 v246, {sW}, 1, v246", "v_mul_u32_u24 v246, 1088, v246", f"v_and_b32 v240, 1, {vG}",
          "v_lshl_add_u32 v246, v240, 9, v246", "v_lshl_add_u32 v246, v247, 5, v246", "v_lshrrev_b32 v240, 2, v247", "v_lshl_add_u32 v240, v240, 4, v246",
          f"v_lshrrev_b32 v246, 3, {vLane}", "v_mul_u32_u24 v246, 2176, v246", "v_xor_b32 v241, s5, v247", f"v_lshl_add_u32 v241, {sW}, 3, v241",
          "v_lshl_add_u32 v241, v241, 4, v246")
    else:
        S("s_lshr_b32 s4, s2, 2", "s_and_b32 s4, s4, 31", "s_lshl_b32 s4, s4, 2", f"s_lshr_b32 s5, {sW}, 1", "s_add_u32 s4, s4, s5", f"s_mul_i32 s4, s4, {QP_STR}",
          "s_lshr_b32 s5, s2, 7", "s_lshl_b32 s5, s5, 2", "s_and_b32 s6, s2, 3", "s_add_u32 s5, s5, s6", "s_lshl_b32 s5, s5, 9", "s_add_u32 s4, s4, s5",
          f"s_and_b32 s5, {sW}, 1", "s_lshl_b32 s5, s5, 8", "s_add_u32 s4, s4, s5", f"s_add_u32 s4, s4, {WS_QP}",
          f"v_lshlrev_b32 v246, 4, {vN}", "v_add_u32 v252, s4, v246")
    S(f"s_and_b32 s5, {sP}, 3", "s_lshl_b32 s5, s5, 3", f"s_add_u32 s5, s5, {sW}", "s_lshl_b32 s5, s5, 2",
      f"s_lshr_b32 s4, {sP}, 2", "s_add_u32 s5, s5, s4", f"s_mul_i32 s5, s5, {QP_STR}", f"s_add_u32 s5, s5, {WS_QP}")
    S(f"v_lshlrev_b32 v246, 4, {vLane}", "v_add_u32 v253, s5, v246")
    S("s_waitcnt lgkmcnt(0)", f"s_add_u32 {sEP1}, s42, 1", f"s_mul_i32 {sTAG}, {sEP1}, 0x9e3779b1",
      f"s_lshr_b32 s4, {sTAG}, 15", f"s_xor_b32 {sTAG}, {sTAG}, s4", f"s_mul_i32 {sTAG}, {sTAG}, 0x85ebca6b",
      f"s_lshr_b32 s4, {sTAG}, 13", f"s_xor_b32 {sTAG}, {sTAG}, s4", f"v_mov_b32 {vT}, {sTAG}")
    S("s_getreg_b32 s25, hwreg(HW_REG_XCC_ID)", f"s_mul_i32 s26, {sP}, {XT_STR}", f"s_add_u32 s26, s26, {WS_XT}")
    S(f"s_cmp_lg_u32 {sW}, 0", "s_cbranch_scc1 L_noxt")
    S(f"s_lshl_b32 s4, {sS}, 3", "s_add_u32 s4, s4, s26", "v_mov_b32 v246, s4", f"v_mov_b32 v{SR}, s25", f"v_mov_b32 v{SR+1}, {sTAG}", "s_mov_b64 exec, 1")
    I0(f"buffer_store_dwordx2 {vr(SR,2)}, v246, {sWS}, 0 offen sc1"); A.vm.pop()
    I("s_mov_b64 exec, -1")
    A.label("L_noxt")

    A.wait_vm("x")
    if ks2:
        for u in range(2):
            S(f"v_perm_b32 v{224+4*u}, v{232+2*u}, v{232+2*u}, {vSE}", f"v_perm_b32 v{225+4*u}, v{232+2*u}, v{232+2*u}, {vSO}",
              f"v_perm_b32 v{226+4*u}, v{233+2*u}, v{233+2*u}, {vSE}", f"v_perm_b32 v{227+4*u}, v{233+2*u}, v{233+2*u}, {vSO}")
    else: afrags(232, 224)
    for u in range(2):
        A.wait_vm(f"wq{u}"); transpose(WR+16*u); projmm(WR, 224, SR, u)
    stamp("wq arrived")
    npre2 = npre
    if ks2:
        d = SR
        S("v_xor_b32 v243, 16, v240", "s_mov_b32 exec_lo, 0x00ff00ff", "s_mov_b32 exec_hi, 0xff00ff00")
        I(f"ds_write2_b64 v240, {vr(d,2)}, {vr(d+4,2)} offset0:0 offset1:1")
        I(f"ds_write2_b64 v240, {vr(d+2,2)}, {vr(d+6,2)} offset0:32 offset1:33")
        I(f"ds_write2_b64 v243, {vr(d+8,2)}, {vr(d+12,2)} offset0:0 offset1:1")
        I(f"ds_write2_b64 v243, {vr(d+10,2)}, {vr(d+14,2)} offset0:32 offset1:33")
        I("s_mov_b64 exec, -1")
        barrier()
        S(f"ds_read_b128 {vr(d)}, v241", f"ds_read_b128 {vr(d+4)}, v241 offset:1088", "s_waitcnt lgkmcnt(0)",
          f"v_pk_add_f32 {vr(d,2)}, {vr(d,2)}, {vr(d+4,2)}", f"v_pk_add_f32 {vr(d+2,2)}, {vr(d+2,2)}, {vr(d+6,2)}")
        for j in range(4): dpp("v_add_f32", d+j, "row_ror:8")
        xrow(d)
        tag4(d)
        I("s_mov_b64 exec, 0xff")
        I(f"buffer_store_dwordx4 {vr(d)}, v252, {sWS}, 0 offen sc1", "qst")
        I("s_mov_b64 exec, -1")
    else:
        write_acc(vRW, SR)
        barrier()
        red_publish(SR, "v252", "qst")
    I("s_barrier")
    stamp("q published")
    for j in range(npre2, 5): loadK(j)
    def gatherQ(tag):
        for i in range(2 if ks2 else 4): I(f"buffer_load_dwordx4 {vr(GR+(8 if ks2 else 4)*i)}, v253, {sWS}, 0 offen offset:{1024*i} sc1", tag)
    S(f"v_lshlrev_b32 v247, 3, {vN}", "v_add_u32 v247, s26, v247")
    I0(f"buffer_load_dwordx2 {vr(SR,2)}, v247, {sWS}, 0 offen sc1", "G")
    gatherQ("G")
    I("s_barrier")
    nv1 = opt.get("nv1", 1)
    for j in range(nv1): loadV(j)
    S(f"v_lshrrev_b32 v246, 5, {vLane}", f"v_mul_u32_u24 v246, {Q_BS}, v246", f"v_and_b32 v247, 31, {vLane}", "v_lshl_add_u32 v246, v247, 3, v246",
      f"s_mul_i32 s4, {sW}, {Q_HS}", "v_add_u32 v252, s4, v246")
    S(f"v_lshrrev_b32 v247, 1, {vN}", f"v_mul_u32_u24 v247, {Q_HS}, v247", f"v_lshl_add_u32 v254, {vG}, 4, v247")
    if klds:
        S(f"s_lshl_b32 s4, {sW}, 13", f"s_add_u32 s4, s4, {L_OB}")
        for st in range(4):
            S(f"v_add_u32 v246, {4*st}, {vG}", f"v_xor_b32 v247, v246, {vN}", "v_lshlrev_b32 v247, 4, v247")
            I(f"v_lshl_add_u32 v{SR+4+st}, v246, 8, v247")
            I(f"v_lshl_add_u32 v{SR+8+st}, {vN}, 8, v247")
            I(f"v_add_u32 v{SR+4+st}, s4, v{SR+4+st}"); I(f"v_add_u32 v{SR+8+st}, s4, v{SR+8+st}")
        for j in range(5):
            A.wait_vm(f"K{j}")
            for st in range(4): I(f"ds_write_b128 v{SR+4+st}, {vr(KR+16*j+4*st)} offset:{4096*(j&1)}")
            for st in range(4): I(f"ds_read_b128 {vr(KR+16*j+4*st)}, v{SR+8+st} offset:{4096*(j&1)}")
            if j in (1, 3): I("s_waitcnt lgkmcnt(4)")
    I("s_mov_b32 s15, 0")
    A.wait_vm("G")
    stamp("G arrived")
    S(f"v_cmp_ne_u32 s[6:7], s25, v{SR}", f"v_cmp_ne_u32 vcc, {vT}, v{SR+1}", "s_or_b64 s[6:7], s[6:7], vcc", "s_cmp_eq_u64 s[6:7], 0", "s_cselect_b32 s22, 1, 0")
    if opt.get("noloc"): I("s_mov_b32 s22, 0")
    A.label("L_qchk")
    for i in range(2 if ks2 else 4): chk4(GR+(8 if ks2 else 4)*i, "v246", i == 0)
    if opt.get("noq"): I("s_mov_b64 s[6:7], 0")
    S("s_cmp_eq_u64 s[6:7], 0", "s_cbranch_scc1 L_qok", "s_add_u32 s15, s15, 1", "s_cmp_gt_u32 s15, 20000", "s_cbranch_scc1 L_qok")
    nvm = len(A.vm)
    gatherQ("G2")
    S("s_waitcnt vmcnt(0)", "s_branch L_qchk")
    del A.vm[nvm:]
    A.label("L_qok")
    stamp("G ok")
    for j in range(0, 0 if ks2 else 4, 2):
        I(f"v_pk_add_f32 {vr(GR+j,2)}, {vr(GR+j,2)}, {vr(GR+4+j,2)}")
        I(f"v_pk_add_f32 {vr(GR+8+j,2)}, {vr(GR+8+j,2)}, {vr(GR+12+j,2)}")
    for j in range(4): I(f"v_permlane32_swap_b32 v{GR+j}, v{GR+8+j}")
    for j in range(0, 4, 2): I(f"v_pk_add_f32 {vr(GR+j,2)}, {vr(GR+j,2)}, {vr(GR+8+j,2)}")
    S(f"v_cvt_pk_bf16_f32 v{GR}, v{GR}, v{GR+1}", f"v_cvt_pk_bf16_f32 v{GR+1}, v{GR+2}, v{GR+3}")
    I(f"ds_write_b64 v252, {vr(GR,2)} offset:{L_Q}")
    barrier()
    QA, QB = WR, WR+16
    for st in range(4): I(f"ds_read_b128 {vr(QB+4*st)}, v254 offset:{L_Q+Q_BS+64*st}")
    for st in range(4): I(f"ds_read_b128 {vr(QA+4*st)}, v254 offset:{L_Q+64*st}")
    S(f"v_lshrrev_b32 v246, 5, {vLane}", f"v_lshl_add_u32 v246, v246, 4, {vN}", "v_lshlrev_b32 v246, 5, v246",
      f"v_lshl_add_u32 v253, {sW}, 2, v246", f"v_lshlrev_b32 v252, 5, {vN}")
    I("s_waitcnt lgkmcnt(0)")
    for st in range(4):
        for j in range(5):
            q = QB if j == 0 else QA
            c = "0" if st == 0 else vr(SR+4*j)
            I(f"v_mfma_f32_16x16x32_bf16 {vr(SR+4*j)}, {vr(KR+16*j+4*st)}, {vr(q+4*st)}, {c}")
    nvq = opt.get("nvq", 2)
    for u in range(opt.get("woearly", 0)): loadWO(u)
    for j in range(nv1, nvq): loadV(j)
    stamp("QK done")
    TM = 80
    mA, mB = f"v{TM}", f"v{TM+1}"
    S(f"v_max3_f32 {mB}, v{SR}, v{SR+1}, v{SR+2}", f"v_max_f32 {mB}, {mB}, v{SR+3}", f"v_max3_f32 {mA}, v{SR+4}, v{SR+5}, v{SR+6}")
    for k in range(SR+7, SR+19, 2): I(f"v_max3_f32 {mA}, {mA}, v{k}, v{k+1}")
    I(f"v_max_f32 {mA}, {mA}, v{SR+19}")
    def xreduce(a, b, op, t):
        S(f"v_permlane32_swap_b32 {a}, {b}", f"{op} {a}, {a}, {b}", f"v_mov_b32 {t}, {a}", f"v_permlane16_swap_b32 {a}, {t}", f"{op} {a}, {a}, {t}")
    xreduce(mA, mB, "v_max_f32", f"v{TM+2}")
    I(f"ds_write_b32 v253, {mA} offset:{L_MX}")
    barrier()
    R = WR
    for k in range(4): I(f"ds_read_b128 {vr(R+4*k)}, v252 offset:{L_MX+(k>>1)*512+(k&1)*16}")
    I("s_waitcnt lgkmcnt(0)")
    for (m, b) in ((mA, R), (mB, R+8)):
        S(f"v_max3_f32 {m}, v{b}, v{b+1}, v{b+2}", f"v_max3_f32 {m}, {m}, v{b+3}, v{b+4}", f"v_max3_f32 {m}, {m}, v{b+5}, v{b+6}", f"v_max_f32 {m}, {m}, v{b+7}")
    S(f"v_mul_f32 {mA}, {sC}, {mA}", f"v_mul_f32 {mB}, {sC}, {mB}")
    for k in range(20):
        I(f"v_fma_f32 v{SR+k}, v{SR+k}, {sC}, -{mB if k < 4 else mA}")
    for k in range(20): I(f"v_exp_f32 v{SR+k}, v{SR+k}")
    lA, lB = f"v{TM+4}", f"v{TM+5}"
    S(f"v_add_f32 {lB}, v{SR}, v{SR+1}", f"v_add_f32 {lB}, {lB}, v{SR+2}", f"v_add_f32 {lB}, {lB}, v{SR+3}", f"v_add_f32 {lA}, v{SR+4}, v{SR+5}")
    for k in range(6, 20): I(f"v_add_f32 {lA}, {lA}, v{SR+k}")
    xreduce(lA, lB, "v_add_f32", f"v{TM+2}")
    I(f"ds_write_b32 v253, {lA} offset:{L_LS}")
    S(f"s_lshl_b32 s4, {sW}, 1", f"v_readlane_b32 s42, {mA}, s4", f"v_readlane_b32 s43, {mB}, s4")
    for j in range(5):
        b = SR+4*j
        S(f"v_cvt_pk_bf16_f32 v{TM+6}, v{b}, v{b+1}", f"v_cvt_pk_bf16_f32 v{TM+7}, v{b+2}, v{b+3}",
          f"v_perm_b32 v{b}, v{TM+6}, v{TM+6}, {vSE}", f"v_perm_b32 v{b+1}, v{TM+6}, v{TM+6}, {vSO}",
          f"v_perm_b32 v{b+2}, v{TM+7}, v{TM+7}, {vSE}", f"v_perm_b32 v{b+3}, v{TM+7}, v{TM+7}, {vSO}")
    stamp("softmax done")
    nv2 = opt.get("nv2", 4)
    for j in range(nvq, nv2): loadV(j)
    OA, OB = 16, 32
    def pv(j, O, first):
        A.wait_vm(f"V{j}")
        transpose(VR+16*j)
        for r in range(4):
            c = "0" if first else vr(O+4*r)
            I(f"v_mfma_f32_16x16x32_bf16 {vr(O+4*r)}, {vr(SR+4*j)}, {vr(VR+16*j+4*r)}, {c}")
    vOW, vOR, vOS, vLSs, vLSr = [f"v{TM+8+i}" for i in range(5)]
    S(f"s_mul_i32 s4, {sW}, {O_STR}", f"v_lshlrev_b32 v246, 10, {vG}", f"v_lshl_add_u32 v246, {vN}, 5, v246", f"v_bfe_u32 v247, {vN}, 2, 1", "v_lshl_add_u32 v246, v247, 4, v246", f"v_add_u32 {vOW}, s4, v246",
      f"v_lshrrev_b32 v246, 3, {vN}", f"v_and_b32 v247, 31, {vLane}", "v_xor_b32 v247, v247, v246",
      f"v_lshrrev_b32 v246, 5, {vLane}", f"v_mul_u32_u24 v246, {4*O_STR}, v246", f"v_lshl_add_u32 v247, {sW}, 5, v247", f"v_lshl_add_u32 {vOR}, v247, 4, v246")
    S(f"s_lshl_b32 s5, {sP}, 17", f"s_lshl_b32 s6, {sW}, 13", "s_add_u32 s5, s5, s6", f"s_lshl_b32 s7, {sS}, 8", "s_add_u32 s5, s5, s7", f"s_add_u32 s5, s5, {WS_OP}")
    S(f"v_and_b32 v246, 1, {vG}", "v_lshlrev_b32 v246, 12, v246", f"v_lshl_add_u32 v246, {vN}, 4, v246", f"v_add_u32 {vOS}, s5, v246")
    S(f"s_lshl_b32 s5, {sP}, 4", f"s_add_u32 s5, s5, {sW}", f"s_mul_i32 s5, s5, {LSE_STR}", f"s_lshl_b32 s7, {sS}, 3", "s_add_u32 s5, s5, s7",
      f"s_add_u32 s5, s5, {WS_LSE}", f"v_mov_b32 {vLSs}, s5", f"s_lshl_b32 s4, {sW}, 6", f"v_mov_b32 {vLSr}, s4",
      "s_mov_b32 s20, 65536", f"s_mov_b32 s21, {8*LSE_STR}")
    def publishO(br, O, Lb):
        I(f"v_add_u32 v246, {Lb}, {vOW}")
        write_acc("v246", O)
        I(f"v_add_u32 v247, {Lb}, {vOR}")
        if br == 0 and opt.get("wolate", 0) == 5:
            for u in range(opt.get("wosplit", 0)): loadWO(u)
        barrier()
        for j in range(4): I(f"ds_read_b128 {vr(R+4*j)}, v247 offset:{j*O_STR}")
        for k in range(2): I(f"ds_read_b128 {vr(R+16+4*k)}, {vLSr} offset:{L_LS+br*512+16*k}")
        I("s_waitcnt lgkmcnt(0)")
        I(f"v_pk_add_f32 {vr(R+16,2)}, {vr(R+16,2)}, {vr(R+18,2)}")
        I(f"v_pk_add_f32 {vr(R+20,2)}, {vr(R+20,2)}, {vr(R+22,2)}")
        I(f"v_pk_add_f32 {vr(R+16,2)}, {vr(R+16,2)}, {vr(R+20,2)}")
        I(f"v_add_f32 v{R+16}, v{R+16}, v{R+17}")
        S(f"v_rcp_f32 v{R+18}, v{R+16}", f"v_log_f32 v{R+20}, v{R+16}")
        sum4(R)
        S(f"v_add_f32 v{R+20}, s{42+br}, v{R+20}", f"v_mov_b32 v{R+21}, {vT}")
        S(f"v_permlane32_swap_b32 v{R}, v{R+1}", f"v_permlane32_swap_b32 v{R+2}, v{R+3}",
          f"v_add_f32 v{R}, v{R}, v{R+1}", f"v_add_f32 v{R+2}, v{R+2}, v{R+3}",
          f"v_mul_f32 v{R}, v{R}, v{R+18}", f"v_mul_f32 v{R+2}, v{R+2}, v{R+18}",
          f"v_mov_b32 v{R+1}, v{R}", f"v_mov_b32 v{R+3}, v{R+2}",
          f"v_permlane32_swap_b32 v{R}, v{R+1}", f"v_permlane32_swap_b32 v{R+2}, v{R+3}")
        tag4(R)
        lstore([(["s_mov_b32 exec_lo, -1", "s_mov_b32 exec_hi, 0"], f"buffer_store_dwordx4 {vr(R)}, {vOS}, {sWS}, {'0' if br == 0 else 's20'} offen", f"ost{br}"),
                (["s_mov_b64 exec, 1"], f"buffer_store_dwordx2 {vr(R+20,2)}, {vLSs}, {sWS}, {'0' if br == 0 else 's21'} offen", f"ost{br}")])
    pv(0, OB, True)
    publishO(1, OB, L_OB)
    if nv2 < 5: I("s_barrier")
    stamp("B published")
    for j in range(nv2, 5): loadV(j)
    wosplit = opt.get("woearly", 0)
    wolate = 0
    vCS, vOCg = vVB, vWQ
    S(f"s_lshl_b32 s4, {sP}, 1", f"s_and_b32 s5, {sW}, 1", "s_add_u32 s4, s4, s5",
      "s_lshl_b32 s6, s4, 4", f"s_add_u32 s6, s6, {sS}", "s_lshl_b32 s6, s6, 12", f"s_add_u32 s6, s6, {WS_OP}",
      f"v_lshlrev_b32 v246, 4, {vLane}", "v_add_u32 v252, s6, v246",
      "s_lshl_b32 s6, s4, 3", f"s_lshr_b32 s7, {sS}, 1", "s_add_u32 s6, s6, s7", f"s_mul_i32 s6, s6, {LSE_STR}", f"s_add_u32 s6, s6, {WS_LSE}",
      f"v_lshlrev_b32 v246, 3, {vN}", "v_add_u32 v253, s6, v246")
    S("s_lshl_b32 s6, s5, 7", f"s_and_b32 s7, {sP}, 3", "s_lshl_b32 s7, s7, 5", "s_add_u32 s6, s6, s7", f"s_lshl_b32 s7, {sS}, 1", "s_add_u32 s6, s6, s7",
      f"s_mul_i32 s6, s6, {OC_STR}", f"s_lshr_b32 s7, {sP}, 2", "s_lshl_b32 s7, s7, 7", "s_add_u32 s6, s6, s7", f"s_add_u32 s6, s6, {WS_OC}",
      f"v_lshrrev_b32 v246, 3, {vN}", f"v_mul_u32_u24 v246, {OC_STR}, v246", f"v_and_b32 v247, 7, {vN}", "v_lshl_add_u32 v246, v247, 4, v246", f"v_add_u32 {vCS}, s6, v246")
    I(f"v_lshlrev_b32 v254, 2, {vG}")
    S(f"s_lshl_b32 s6, {sBK}, 3", f"s_add_u32 s6, s6, {sW}", f"s_mul_i32 s6, s6, {OC_STR}", f"s_add_u32 s6, s6, {WS_OC}",
      f"v_and_b32 v246, 31, {vLane}", "v_lshlrev_b32 v246, 4, v246", f"v_add_u32 {vOCg}, s6, v246",
      f"v_lshlrev_b32 v246, 5, {vB}", f"v_lshl_add_u32 v246, {vXb}, 4, v246", f"v_lshl_add_u32 {vX}, {vG}, 2, v246")
    vFS, vFG = vKA, vKB
    S(f"s_lshr_b32 s4, {sBK}, 4", "s_lshl_b32 s4, s4, 3", f"s_add_u32 s4, s4, {sCB}", "s_lshl_b32 s4, s4, 4",
      f"s_and_b32 s5, {sBK}, 15", f"s_lshl_b32 s6, {sW}, 1", "s_add_u32 s6, s6, s4", f"s_mul_i32 s6, s6, {FP_STR}",
      "s_lshl_b32 s7, s5, 7", "s_add_u32 s6, s6, s7", f"s_add_u32 s6, s6, {WS_FP}")
    S(f"v_lshrrev_b32 v246, 3, {vN}", f"v_mul_u32_u24 v246, {FP_STR}, v246", f"v_and_b32 v247, 7, {vN}", "v_lshl_add_u32 v246, v247, 4, v246", f"v_add_u32 {vFS}, s6, v246")
    S("s_add_u32 s6, s4, s5", f"s_mul_i32 s6, s6, {FP_STR}", f"s_add_u32 s6, s6, {WS_FP}")
    S(f"v_lshlrev_b32 v246, 4, {vLane}", f"v_add_u32 {vFG}, s6, v246")
    if opt.get("pretouch"):
        pm = opt["pretouch"].replace("_", " ")
        S(f"s_cmp_gt_u32 {sW}, 1", "s_cbranch_scc1 L_npt")
        I0(f"buffer_load_dwordx2 {vr(WO,2)}, v253, {sWS}, 0 offen {pm}"); A.vm.pop()
        for i in range(4):
            I0(f"buffer_load_dwordx4 {vr(WO)}, v252, {sWS}, 0 offen offset:{1024*i} {pm}"); A.vm.pop()
        A.label("L_npt")
    for j in range(1, 5):
        pv(j, OA, j == 1)
        if wolate == j:
            for u in range(wosplit): loadWO(u)
    stamp("PV done")
    DG, LG, TT = 96, 112, 144
    prepoll = opt.get("prepoll", 0)
    if prepoll:
        S(f"s_cmp_gt_u32 {sW}, 1", "s_cbranch_scc1 L_npp")
        I(f"buffer_load_dwordx2 {vr(LG,2)}, v253, {sWS}, 0 offen sc1"); A.vm.pop()
        A.label("L_npp")
    publishO(0, OA, L_OA)
    I("s_barrier")
    stamp("A published")
    DG, LG, TT = 96, 112, 144
    cgm = opt.get("cgm", "sc1_nt").replace("_", " ")
    def cgather():
        I(f"buffer_load_dwordx2 {vr(LG,2)}, v253, {sWS}, 0 offen {cgm}")
        for i in range(4): I(f"buffer_load_dwordx4 {vr(DG+4*i)}, v252, {sWS}, 0 offen offset:{1024*i} {cgm}")
    womid = max(opt.get("womid", 1), wosplit)
    S("s_mov_b32 s23, 0", "s_mov_b32 s24, 0", "s_mov_b32 s15, 0", (f"s_cmp_gt_u32 {sW}, 1" if not opt.get("abl",0)&1 else "s_cmp_eq_u32 s2, s2"), "s_cbranch_scc1 L_cng")
    if prepoll:
        S("s_waitcnt vmcnt(2)", f"v_cmp_ne_u32 vcc, v{LG+1}, {vT}", f"v_cmp_ne_u32 s[6:7], {sS}, {vN}", "s_and_b64 vcc, vcc, s[6:7]",
          "s_mov_b32 s24, 1", "s_cbranch_vccnz L_cng", "s_mov_b32 s24, 0")
    nvm = len(A.vm); cgather(); del A.vm[nvm:]
    A.label("L_cng")
    for u in range(wosplit, womid): loadWO(u)
    S((f"s_cmp_gt_u32 {sW}, 1" if not opt.get("abl",0)&1 else "s_cmp_eq_u32 s2, s2"), "s_cbranch_scc1 L_cskip")
    S("s_cmp_lg_u32 s24, 0", "s_cbranch_scc1 L_cskip")
    I(f"s_waitcnt vmcnt({4*(womid-wosplit)})")
    I("s_branch L_cchk")
    nvm = len(A.vm)
    A.label("L_c")
    S("s_add_u32 s15, s15, 1", "s_cmp_gt_u32 s15, 20000", "s_cbranch_scc1 L_cdo")
    if opt.get("slp", 0): I(f"s_sleep {opt.get('slp', 0)}")
    if not opt.get("fullretry", 1):
        I(f"buffer_load_dwordx2 {vr(LG,2)}, v253, {sWS}, 0 offen sc1")
        S("s_waitcnt vmcnt(0)", f"v_cmp_ne_u32 vcc, v{LG+1}, {vT}", "s_cbranch_vccnz L_c")
    cgather()
    I("s_waitcnt vmcnt(0)")
    A.label("L_cchk")
    if ts and opt.get("cst"):
        k0 = nts[0]; nts[0] = 20
        S("s_cmp_lg_u32 s15, 0", "s_cbranch_scc1 L_cst1"); stamp("first gather back"); A.label("L_cst1")
        nts[0] = 21; stamp("last gather back")
        I(f"v_writelane_b32 {vTS}, s15, 22")
        nts[0] = k0
    for i in range(4): chk4(DG+4*i, "v246", i == 0)
    S(f"v_cmp_ne_u32 vcc, v{LG+1}, {vT}", "s_or_b64 s[6:7], s[6:7], vcc", "s_cmp_eq_u64 s[6:7], 0", "s_cbranch_scc1 L_cdo")
    if not opt.get("cwait", 1): S("s_mov_b32 s24, 1", "s_cmp_eq_u32 s23, 0", "s_cbranch_scc1 L_cskip")
    I("s_branch L_c")
    A.label("L_cdo")
    I(f"v_mov_b32 v{TT}, v{LG}")
    for k in (8, 4, 2, 1): dpp("v_max_f32", TT, f"row_ror:{k}")
    S(f"v_sub_f32 v{LG}, v{LG}, v{TT}", f"v_exp_f32 v{LG}, v{LG}", f"v_mov_b32 v{TT+1}, v{LG}")
    for k in (8, 4, 2, 1): dpp("v_add_f32", TT+1, f"row_ror:{k}")
    S(f"v_rcp_f32 v{TT+1}, v{TT+1}", f"v_mul_f32 v{LG}, v{LG}, v{TT+1}")
    for i in range(4): I(f"ds_bpermute_b32 v{LG+2+i}, v254, v{LG} offset:{16*i}")
    I("s_waitcnt lgkmcnt(0)")
    AC = TT+4
    for j in range(4): I(f"v_mul_f32 v{AC+j}, v{LG+2}, v{DG+j}")
    for i in range(1, 4):
        for j in range(4): I(f"v_fmac_f32 v{AC+j}, v{LG+2+i}, v{DG+4*i+j}")
    xrow(AC)
    tag4(AC)
    I("s_mov_b64 exec, 0xffff")
    I(f"buffer_store_dwordx4 {vr(AC)}, {vCS}, {sWS}, 0 offen sc1")
    I("s_mov_b64 exec, -1")
    if ts and opt.get("cst"):
        k0 = nts[0]; nts[0] = 23; stamp("OC stored"); nts[0] = k0
    S("s_mov_b32 s24, 0", "s_cmp_lg_u32 s23, 0", "s_cbranch_scc1 L_cend")
    del A.vm[nvm:]
    A.label("L_cskip")
    I("s_barrier")
    stamp("C1 done")
    OG, OG0 = 120, 124
    early = opt.get("early", 0) and womid < 2 and opt.get("cwait", 1)
    if early: I(f"buffer_load_dwordx4 {vr(OG0)}, {vOCg}, {sWS}, 0 offen sc1", "GO0")
    for u in range(womid, 2): loadWO(u)
    S("s_mov_b32 s23, 1", "s_cmp_lg_u32 s24, 0", "s_cbranch_scc1 L_c")
    A.label("L_cend")
    if opt.get("fpt", 1):
        S(f"s_cmp_lg_u32 {sW}, 0", "s_cbranch_scc1 L_nfpt")
        fpm = opt.get("fpm", "sc1").replace("_", " ")
        I0(f"buffer_load_dwordx4 v[128:131], {vFG}, {sWS}, 0 offen {fpm}"); A.vm.pop()
        I0(f"buffer_load_dwordx4 v[128:131], {vFG}, {sWS}, 0 offen offset:1024 {fpm}"); A.vm.pop()
        A.label("L_nfpt")
    I(f"buffer_load_dwordx4 {vr(OG)}, {vOCg}, {sWS}, 0 offen sc1", "GO")
    def ofrags(og):
        S(f"v_cvt_pk_bf16_f32 v{TT+10}, v{og}, v{og+1}", f"v_cvt_pk_bf16_f32 v{TT+11}, v{og+2}, v{og+3}",
          f"ds_bpermute_b32 v{TT+8}, {vX}, v{TT+10}", f"ds_bpermute_b32 v{TT+9}, {vX}, v{TT+11}", "s_waitcnt lgkmcnt(0)")
        afrags(TT+8, 224)
    A.wait_vm("wo0"); transpose(WO)
    if early:
        A.wait_vm("GO0")
        chk4(OG0, "v246", True)
        S("s_cmp_eq_u64 s[6:7], 0", "s_cbranch_scc0 L_late")
        ofrags(OG0)
        projmm(WO, 224, SR, 0)
        A.wait_vm("wo1"); transpose(WO+16)
        projmm(WO, 224, SR, 1)
        I("s_branch L_pdone")
        A.label("L_late")
    A.wait_vm("wo1"); transpose(WO+16)
    stamp("wo arrived")
    I("s_mov_b32 s15, 0")
    A.wait_vm("GO")
    A.label("L_ochk")
    chk4(OG, "v246", True)
    if opt.get("abl",0)&2: I("s_mov_b64 s[6:7], 0")
    S("s_cmp_eq_u64 s[6:7], 0", "s_cbranch_scc1 L_ook", "s_add_u32 s15, s15, 1", "s_cmp_gt_u32 s15, 20000", "s_cbranch_scc1 L_ook")
    nvm = len(A.vm)
    I(f"buffer_load_dwordx4 {vr(OG)}, {vOCg}, {sWS}, 0 offen sc1")
    S("s_waitcnt vmcnt(0)", "s_branch L_ochk")
    del A.vm[nvm:]
    A.label("L_ook")
    ofrags(OG)
    for u in range(2): projmm(WO, 224, SR, u)
    A.label("L_pdone")
    stamp("GO ok")
    write_acc(vRW, SR)
    barrier()
    red_publish(SR, vFS, "fst", local=True)
    stamp("F published")
    S(f"s_cmp_lg_u32 {sW}, 0", "s_cbranch_scc1 L_fin")
    S(f"s_and_b32 s4, {sBK}, 15", "s_lshr_b32 s5, s4, 2", "s_lshl_b32 s5, s5, 12", "s_and_b32 s4, s4, 3", "s_lshl_b32 s4, s4, 6", "s_add_u32 s5, s5, s4",
      f"s_lshr_b32 s4, {sBK}, 4", "s_lshl_b32 s4, s4, 11", "s_add_u32 s5, s5, s4", f"s_lshl_b32 s4, {sCB}, 8", "s_add_u32 s5, s5, s4")
    S(f"v_and_b32 v252, 7, {vLane}", "v_lshlrev_b32 v252, 3, v252", f"v_and_b32 v247, 1, {vG}", "v_lshl_add_u32 v252, v247, 2, v252",
      f"v_lshrrev_b32 v247, 1, {vG}", "v_lshl_add_u32 v252, v247, 1, v252", "v_add_u32 v252, s5, v252")
    I("s_mov_b32 s15, 0")
    A.label("L_fl")
    if opt.get("slpf", 0): I(f"s_sleep {opt.get('slpf')}")
    fgm = opt.get("fgm", "sc1_nt").replace("_", " ")
    I(f"buffer_load_dwordx4 {vr(DG)}, {vFG}, {sWS}, 0 offen {fgm}")
    I(f"buffer_load_dwordx4 {vr(DG+4)}, {vFG}, {sWS}, 0 offen offset:1024 {fgm}")
    I("s_waitcnt vmcnt(0)")
    chk4(DG, "v246", True); chk4(DG+4, "v246", False)
    if opt.get("abl",0)&4: I("s_mov_b64 s[6:7], 0")
    S("s_cmp_eq_u64 s[6:7], 0", "s_cbranch_scc1 L_fok", "s_add_u32 s15, s15, 1", "s_cmp_gt_u32 s15, 20000", "s_cbranch_scc0 L_fl")
    A.label("L_fok")
    stamp("F ok")
    S(f"v_pk_add_f32 {vr(DG,2)}, {vr(DG,2)}, {vr(DG+4,2)}", f"v_pk_add_f32 {vr(DG+2,2)}, {vr(DG+2,2)}, {vr(DG+6,2)}",
      f"v_permlane32_swap_b32 v{DG}, v{DG+1}", f"v_permlane32_swap_b32 v{DG+2}, v{DG+3}",
      f"v_add_f32 v{DG}, v{DG}, v{DG+1}", f"v_add_f32 v{DG+2}, v{DG+2}, v{DG+3}",
      f"v_permlane16_swap_b32 v{DG}, v{DG+2}", f"v_add_f32 v{DG}, v{DG}, v{DG+2}")
    dpp("v_add_f32", DG, "row_ror:8")
    I(f"v_cvt_pk_bf16_f32 v{DG}, v{DG}, v{DG}")
    S("s_mov_b32 exec_lo, 0x00ff00ff", "s_mov_b32 exec_hi, 0x00ff00ff")
    I(f"buffer_store_short v{DG}, v252, {sOUT}, 0 offen")
    S("s_mov_b64 exec, -1", "s_cmp_lg_u32 s2, 0", "s_cbranch_scc1 L_fin")
    S("v_mov_b32 v246, 0", f"v_mov_b32 v247, {sEP1}", "s_mov_b64 exec, 1")
    I(f"buffer_store_dword v247, v246, {sWS}, 0 offen")
    I("s_mov_b64 exec, -1")
    A.label("L_fin")
    if ts and opt.get("dbg"):
        nts[0] = 14; stamp("end")
        S(f"v_readlane_b32 s4, {vTS}, 0", "s_not_b32 s4, s4", f"v_writelane_b32 {vTS}, s4, 15")
        S("s_mov_b32 s20, s38", "s_mov_b32 s21, s39", "s_mov_b32 s22, 256", "s_mov_b32 s23, 0x00020000")
        S(f"v_lshlrev_b32 v246, 2, {vLane}", "s_mov_b64 exec, 0xffff")
        I(f"buffer_atomic_umax {vTS}, v246, s[20:23], 0 offen")
    elif ts:
        nts[0] = 31; stamp("end")
        S("s_lshl_b32 s4, s2, 3", f"s_add_u32 s4, s4, {sW}", "s_lshl_b32 s4, s4, 7", f"s_add_u32 s4, s4, {WS_TS}",
          f"v_lshlrev_b32 v246, 2, {vLane}", "v_add_u32 v246, s4, v246", "s_mov_b32 exec_lo, -1", "s_mov_b32 exec_hi, 0")
        I(f"buffer_store_dword {vTS}, v246, {sWS}, 0 offen")
    A.raw("L_end:")
    I("s_endpgm")
    A.raw(f""".section .rodata,"a"
.p2align 6
.amdhsa_kernel {NAME}_kernel
  .amdhsa_next_free_vgpr 256
  .amdhsa_next_free_sgpr 102
  .amdhsa_accum_offset 256
  .amdhsa_group_segment_fixed_size 0
  .amdhsa_kernarg_size 104
  .amdhsa_user_sgpr_count 2
  .amdhsa_user_sgpr_kernarg_segment_ptr 1
  .amdhsa_system_sgpr_workgroup_id_x 1
.end_amdhsa_kernel""")
    return A.text()

if __name__ == "__main__":
    ts = "--ts" in sys.argv
    out = sys.argv[1]
    opt = {}
    for a in sys.argv[2:]:
        if "=" in a:
            k, v = a.split("="); opt[k] = int(v) if v.isdigit() else v
    open(out, "w").write(gen(ts=ts, opt=opt))
```

```python
import re
_REG = re.compile(r'^(v|s|a)(\d+)$|^(v|s|a)\[(\d+):(\d+)\]$')
TRANS = ("v_exp_f32","v_log_f32","v_rcp_f32","v_rsq_f32","v_sqrt_f32","v_sin_f32","v_cos_f32")
def regs(op):
    op = op.strip()
    if op.startswith("-"): op = op[1:]
    if op.startswith("abs(") : op = op[4:-1]
    if op.startswith("|"): op = op.strip("|")
    if op == "vcc": return [("s",106),("s",107)]
    if op == "exec": return [("s",126),("s",127)]
    m = _REG.match(op)
    if not m: return []
    if m.group(1): return [(m.group(1), int(m.group(2)))]
    return [(m.group(3), i) for i in range(int(m.group(4)), int(m.group(5))+1)]

class Asm:
    def __init__(self):
        self.lines = []
        self.slot = 0
        self.valu_w = {}
        self.trans_w = {}
        self.mfma_w = {}
        self.mfma_c = {}
        self.st_data = {}
        self.vm = []
        self.maxv = 0; self.maxs = 0
    def raw(self, text):
        self.lines.append(text)
    def comment(self, t):
        self.lines.append("  ; " + t)
    def nop(self, n):
        while n > 0:
            k = min(n, 16)
            self.lines.append(f"  s_nop {k-1}")
            self.slot += k
            n -= k
    def fence(self):
        need = 0
        for r, sl in self.valu_w.items(): need = max(need, (5 if r[0] == "s" else 2) - (self.slot - sl - 1))
        for d, w in ((self.trans_w,1),(self.mfma_c,3),(self.st_data,2)):
            for r, sl in d.items(): need = max(need, w - (self.slot - sl - 1))
        for r,(sl,_,_) in self.mfma_w.items(): need = max(need, 8 - (self.slot - sl - 1))
        if need > 0: self.nop(need)
    def label(self, name):
        self.fence()
        self.lines.append(name + ":")
    def I(self, text, tag=None):
        text = text.strip()
        parts = text.split(None, 1)
        mn = parts[0]
        if mn.startswith("s_cbranch") or mn == "s_branch":
            self.slot += 1; self.fence(); self.slot -= 1
        rest = parts[1] if len(parts) > 1 else ""
        ops = []; depth = 0; cur = ""
        for ch in rest:
            if ch == "[": depth += 1
            if ch == "]": depth -= 1
            if ch == "," and depth == 0:
                ops.append(cur.strip()); cur = ""
            else: cur += ch
        if cur.strip(): ops.append(cur.strip())
        mods = ""
        if ops:
            sp = ops[-1].split(None, 1)
            ops[-1] = sp[0]
            if len(sp) > 1: mods = sp[1]
        R = [regs(o) for o in ops]
        for rl in R:
            for (k,i) in rl:
                if k == "v": self.maxv = max(self.maxv, i)
                if k == "s" and i < 104: self.maxs = max(self.maxs, i)
        need = 0
        def dist(sl): return self.slot - sl - 1
        def req(d, r, w):
            nonlocal need
            if r in d:
                sl = d[r][0] if isinstance(d[r], tuple) else d[r]
                need = max(need, w - dist(sl))
        is_mfma = mn.startswith("v_mfma")
        is_valu = mn.startswith("v_") and not is_mfma
        is_vmem = mn.startswith("buffer_") or mn.startswith("global_")
        is_ds = mn.startswith("ds_")
        dst = []; src = []
        if is_mfma:
            dst = R[0]; A, B, C = R[1], R[2], R[3]
            for r in A + B + C: req(self.valu_w, r, 2)
            for r in A + B: req(self.mfma_w, r, 8)
            for r in C:
                if r in self.mfma_w:
                    sl, ds_, dl = self.mfma_w[r]
                    if not (ds_ == C[0][1] and dl == len(C)): need = max(need, 6 - dist(sl))
            for r in dst:
                if r in self.mfma_w and r not in C: req(self.mfma_w, r, 8)
        elif is_valu:
            base = mn.replace("_dpp","").replace("_e32","").replace("_e64","")
            if base in ("v_swap_b32","v_permlane16_swap_b32","v_permlane32_swap_b32"):
                dst = R[0] + R[1]; src = R[0] + R[1]
            else:
                dst = R[0]; src = [r for rl in R[1:] for r in rl]
                if base in ("v_fmac_f32","v_writelane_b32"): src += R[0]
            for r in src + dst: req(self.mfma_w, r, 8)
            for r in dst:
                req(self.mfma_c, r, 3); req(self.st_data, r, 2)
            if base not in TRANS:
                for r in src: req(self.trans_w, r, 1)
            if "_dpp" in mn:
                for r in R[1]: req(self.valu_w, r, 2)
            if base.startswith("v_permlane"):
                for r in src: req(self.valu_w, r, 2)
            if base in ("v_readfirstlane_b32","v_readlane_b32"):
                for r in R[1]: req(self.valu_w, r, 1)
                if base == "v_readlane_b32":
                    for r in R[2]: req(self.valu_w, r, 4)
            for r in src:
                if r[0] == "s": req(self.valu_w, r, 2)
        elif is_vmem or is_ds:
            if "load" in mn or mn.startswith("ds_read") or mn.startswith("ds_bpermute"):
                dst = R[0]; src = [r for rl in R[1:] for r in rl]
            else:
                src = [r for rl in R for r in rl]
            for r in src + dst: req(self.mfma_w, r, 8)
            for r in src:
                if r[0] == "s": req(self.valu_w, r, 5)
                req(self.trans_w, r, 1)
            for r in dst:
                req(self.st_data, r, 2); req(self.mfma_c, r, 3)
        if need > 0: self.nop(need)
        self.lines.append("  " + text)
        sl = self.slot
        m = re.match(r"s_nop\s+(\d+)", text)
        self.slot += (int(m.group(1)) + 1) if m else 1
        if is_mfma:
            for r in dst: self.mfma_w[r] = (sl, dst[0][1], len(dst))
            for r in R[3]: self.mfma_c[r] = sl
        elif is_valu:
            for r in dst:
                self.valu_w[r] = sl
                self.mfma_w.pop(r, None)
                if mn.replace("_e32","") in TRANS: self.trans_w[r] = sl
                else: self.trans_w.pop(r, None)
        elif is_vmem:
            if "store" in mn and ("x4" in mn or "x3" in mn):
                for r in R[0]: self.st_data[r] = sl
            self.vm.append(tag)
            for r in dst:
                self.mfma_w.pop(r, None); self.valu_w.pop(r, None); self.trans_w.pop(r, None)
        elif is_ds:
            for r in dst:
                self.mfma_w.pop(r, None); self.valu_w.pop(r, None); self.trans_w.pop(r, None)
        elif mn.startswith("s_") and R and mn not in ("s_cmp_eq_u32",):
            if not mn.startswith("s_cmp") and not mn.startswith("s_cbranch") and not mn.startswith("s_waitcnt"):
                for r in R[0]: self.valu_w.pop(r, None)
    def wait_vm(self, tag, lgkm=False):
        idx = max(i for i, t in enumerate(self.vm) if t == tag)
        n = len(self.vm) - 1 - idx
        assert n <= 63, n
        self.I(f"s_waitcnt vmcnt({n})" + (" lgkmcnt(0)" if lgkm else ""))
        return n
    def text(self):
        return "\n".join(self.lines) + "\n"
```

```python
import sys, struct
sys.path.insert(0, "dev")
from asmlib import Asm
NAME = "concat_heads__gqa_block_cached__sliding_block_cached__decode"
HEADER = open("cdna_kernels/" + NAME + ".s.ref").read().split("; Override launch geometry")[0]

WS_OP = 0x200000; WS_QP = 0x400000; WS_LSE = 0x700000; WS_FP = 0xA00000; WS_OC = 0xD00000; WS_XT = 0x1000; WS_TS = 0x1000000
QP_STR = 0x5000; LSE_STR = 0x2100; FP_STR = 0x2800; OC_STR = 0x2200; XT_STR = 0x2100
L_RED = 0; RED_STR = 2048
L_Q = 33024; Q_HS = 272; Q_BS = 2176
L_MX = 37376; L_LS = 38400
L_OB = 39424; L_OA = 72448; O_STR = 4128
LDS_BYTES = 105472
SCALE = (128 ** -0.5) * 1.4426950408889634
def f32(x): return "0x%08x" % struct.unpack("<I", struct.pack("<f", x))[0]

sKA, sVA, sKB, sVB, sWQ, sWO, sX, sWS, sOUT = [f"s[{44+4*i}:{47+4*i}]" for i in range(9)]
sW = "s3"
sP, sS, sBK, sCB = "s16", "s17", "s18", "s19"
sTAG = "s99"; sEP1 = "s100"; sC = "s101"
vLane, vG, vN = "v1", "v2", "v3"
vKA, vKB, vVA, vVB, vWQ, vWO, vX = "v4", "v5", "v6", "v7", "v8", "v9", "v10"
vSE, vSO, vSE0, vSO0, vSE1, vSO1 = "v11", "v12", "v13", "v14", "v15", "v244"
vT = "v245"; vB = "v248"; vXb = "v249"; vRW = "v250"; vRR = "v251"; vTS = "v255"
KR, VR, WR, SR, GR = 16, 96, 176, 208, 228
def vr(b, n=4): return f"v[{b}:{b+n-1}]"

def gen(ts=False, opt=None):
    opt = opt or {}
    xcd = opt.get("xcd", 1)
    A = Asm(); I0 = A.I
    def I(text, tag=None):
        if opt.get("noq") and tag == "qst" and opt["noq"] & 1: return I0("s_nop 0")
        if opt.get("noq") and tag in ("G", "G2") and "x4" in text and opt["noq"] & 2: return I0("s_nop 0")
        if opt.get("gnt") and text.startswith("buffer_load") and text.endswith("sc1"):
            isq = tag in ("G", "G2")
            if (isq and opt["gnt"] & 1) or (not isq and opt["gnt"] & 2): text += " nt"
        return I0(text, tag)
    def S(*lines):
        for l in lines: I(l)
    nts = [0]
    def stamp(name=""):
        if not ts: return
        k = nts[0]; nts[0] += 1
        assert k < 32
        S("s_memrealtime s[4:5]", "s_waitcnt lgkmcnt(0)", f"v_writelane_b32 {vTS}, s4, {k}")
    def transpose(b):
        for (x, y) in ((1,4),(2,8),(3,12),(6,9),(7,13),(11,14)):
            I(f"v_swap_b32 v{b+x}, v{b+y}")
    def tag4(b):
        for i in range(4): I(f"v_perm_b32 v{b+i}, v{b+i}, {vT}, s{8+i}")
    def chk4(b, tmp, first):
        I(f"v_perm_b32 {tmp}, v{b+1}, v{b}, s12")
        I(f"v_perm_b32 {tmp}, v{b+2}, {tmp}, s13")
        I(f"v_perm_b32 {tmp}, v{b+3}, {tmp}, s14")
        if first: I(f"v_cmp_ne_u32 s[6:7], {tmp}, {vT}")
        else: S(f"v_cmp_ne_u32 vcc, {tmp}, {vT}", "s_or_b64 s[6:7], s[6:7], vcc")
    def untag4(b):
        for i in range(4): I(f"v_and_b32 v{b+i}, 0xffffff00, v{b+i}")
    def write_acc(vaddr, d):
        I(f"v_xor_b32 v243, 16, {vaddr}")
        I(f"ds_write2_b64 {vaddr}, {vr(d,2)}, {vr(d+4,2)} offset0:0 offset1:1")
        I(f"ds_write2_b64 {vaddr}, {vr(d+2,2)}, {vr(d+6,2)} offset0:64 offset1:65")
        I(f"ds_write2_b64 v243, {vr(d+8,2)}, {vr(d+12,2)} offset0:0 offset1:1")
        I(f"ds_write2_b64 v243, {vr(d+10,2)}, {vr(d+14,2)} offset0:64 offset1:65")
    def barrier():
        S("s_waitcnt lgkmcnt(0)", "s_barrier")
    def sum4(D):
        I(f"v_pk_add_f32 {vr(D,2)}, {vr(D,2)}, {vr(D+4,2)}")
        I(f"v_pk_add_f32 {vr(D+2,2)}, {vr(D+2,2)}, {vr(D+6,2)}")
        I(f"v_pk_add_f32 {vr(D+8,2)}, {vr(D+8,2)}, {vr(D+12,2)}")
        I(f"v_pk_add_f32 {vr(D+10,2)}, {vr(D+10,2)}, {vr(D+14,2)}")
        I(f"v_pk_add_f32 {vr(D,2)}, {vr(D,2)}, {vr(D+8,2)}")
        I(f"v_pk_add_f32 {vr(D+2,2)}, {vr(D+2,2)}, {vr(D+10,2)}")
    def dpp(op, r, ctl): I(f"{op}_dpp v{r}, v{r}, v{r} {ctl} row_mask:0xf bank_mask:0xf")
    def afrags(xb, af):
        for u, (se, so) in enumerate(((vSE0, vSO0), (vSE1, vSO1))):
            I(f"v_perm_b32 v{af+4*u+0}, v{xb}, v{xb}, {se}")
            I(f"v_perm_b32 v{af+4*u+1}, v{xb}, v{xb}, {so}")
            I(f"v_perm_b32 v{af+4*u+2}, v{xb+1}, v{xb+1}, {se}")
            I(f"v_perm_b32 v{af+4*u+3}, v{xb+1}, v{xb+1}, {so}")
    def projmm(Wb, af, D, u):
        for r in range(4):
            c = "0" if u == 0 else vr(D+4*r)
            I(f"v_mfma_f32_16x16x32_bf16 {vr(D+4*r)}, {vr(af+4*u)}, {vr(Wb+16*u+4*r)}, {c}")
    nlab = [0]
    def lstore(stores):
        n = nlab[0]; nlab[0] += 1
        S("s_cmp_lg_u32 s22, 0", f"s_cbranch_scc1 L_sl{n}")
        for pre, txt, tag in stores:
            S(*pre); I(txt + " sc1", tag)
        I(f"s_branch L_sd{n}")
        A.label(f"L_sl{n}")
        for pre, txt, tag in stores:
            S(*pre); I(txt, tag); A.vm.pop()
        A.label(f"L_sd{n}")
        I("s_mov_b64 exec, -1")
    def xrow(D):
        a0, a1, a2, a3 = [f"v{D+j}" for j in range(4)]
        S(f"v_permlane32_swap_b32 {a0}, {a2}", f"v_permlane32_swap_b32 {a1}, {a3}",
          f"v_add_f32 {a0}, {a0}, {a2}", f"v_add_f32 {a1}, {a1}, {a3}",
          f"v_permlane16_swap_b32 {a0}, {a1}", f"v_add_f32 {a0}, {a0}, {a1}",
          f"v_mov_b32 {a1}, {a0}", f"v_permlane16_swap_b32 {a0}, {a1}",
          f"v_mov_b32 {a2}, {a0}", f"v_mov_b32 {a3}, {a1}",
          f"v_permlane32_swap_b32 {a0}, {a2}", f"v_permlane32_swap_b32 {a1}, {a3}")
    def red_publish(D, vaddr, tag, local=False):
        for j in range(4): I(f"ds_read_b128 {vr(D+4*j)}, {vRR} offset:{L_RED+j*RED_STR}")
        I("s_waitcnt lgkmcnt(0)")
        sum4(D)
        xrow(D)
        tag4(D)
        if local:
            lstore([(["s_mov_b64 exec, 0xffff"], f"buffer_store_dwordx4 {vr(D)}, {vaddr}, {sWS}, 0 offen", tag)])
        else:
            S("s_mov_b64 exec, 0xffff")
            I(f"buffer_store_dwordx4 {vr(D)}, {vaddr}, {sWS}, 0 offen sc1", tag)
            I("s_mov_b64 exec, -1")

    A.raw(HEADER.rstrip())
    A.raw(f"; @launch grid=(256,1,1) block=(512,1,1) lds={LDS_BYTES}")
    A.raw('.amdgcn_target "amdgcn-amd-amdhsa--gfx950"\n.text')
    A.raw(f".globl {NAME}_kernel\n.p2align 8\n.type {NAME}_kernel,@function\n{NAME}_kernel:")
    S("s_cmp_ge_u32 s2, 256", "s_cbranch_scc1 L_end")
    S("s_load_dwordx16 s[16:31], s[0:1], 0", "s_load_dwordx8 s[32:39], s[0:1], 64", "s_load_dwordx2 s[40:41], s[0:1], 96")
    if ts: I(f"v_mov_b32 {vTS}, 0")
    stamp("start")
    S("v_lshrrev_b32 v246, 6, v0", f"v_and_b32 {vLane}, 63, v0", f"v_readfirstlane_b32 {sW}, v246",
      f"v_lshrrev_b32 {vG}, 4, {vLane}", f"v_and_b32 {vN}, 15, {vLane}", f"v_lshlrev_b32 v247, 4, {vN}")
    ks2 = opt.get("ks2", 1)
    if opt.get("qperm", 0):
        S("s_and_b32 s43, s2, 0x81", "s_bfe_u32 s10, s2, 0x40003", "s_lshl_b32 s10, s10, 1", "s_or_b32 s43, s43, s10",
          "s_bfe_u32 s10, s2, 0x20001", "s_lshl_b32 s10, s10, 5", "s_or_b32 s43, s43, s10")
    elif opt.get("qev", 1):
        S("s_and_b32 s43, s2, 0xfc", "s_bfe_u32 s10, s2, 0x10001", "s_or_b32 s43, s43, s10", "s_and_b32 s10, s2, 1", "s_lshl_b32 s10, s10, 1",
          "s_or_b32 s43, s43, s10", f"s_xor_b32 s43, s43, {opt.get('qx', 6)}")
    else: I(f"s_xor_b32 s43, s2, {opt.get('qx', 0)}")
    if ks2:
        rot = opt.get("rot", 0)
        if rot: S(f"s_lshr_b32 s11, s43, {rot}", f"s_add_u32 s11, s11, {sW}", "s_and_b32 s11, s11, 7", "s_lshl_b32 s11, s11, 6")
        else: I(f"s_lshl_b32 s11, {sW}, 6")
        S("s_and_b32 s10, s43, 1", "s_lshl_b32 s10, s10, 9", "s_add_u32 s10, s10, s11", f"s_lshl_b32 s11, {sW}, 5",
          "s_lshl_b32 s12, s10, 13", "s_bfe_u32 s13, s43, 0x60001", "s_lshl_b32 s13, s13, 7", "s_add_u32 s12, s12, s13")
        S(f"v_lshrrev_b32 v246, 3, {vN}", "v_lshlrev_b32 v246, 17, v246", f"v_lshl_add_u32 v246, {vG}, 15, v246", f"v_and_b32 v248, 7, {vN}",
          "v_lshl_add_u32 v246, v248, 4, v246", f"v_add_u32 {vWQ}, s12, v246")
    else:
        S("s_and_b32 s10, s2, 3", "s_lshl_b32 s10, s10, 8", f"s_lshl_b32 s11, {sW}, 5", "s_add_u32 s10, s10, s11",
          "s_lshl_b32 s12, s10, 13", "s_lshr_b32 s13, s2, 2", "s_and_b32 s13, s13, 31", "s_lshl_b32 s13, s13, 8", "s_add_u32 s12, s12, s13")
        S(f"v_lshl_add_u32 v246, {vG}, 15, v247", f"v_add_u32 {vWQ}, s12, v246")
    S(f"v_bfe_u32 {vB}, {vLane}, 1, 2", f"v_bfe_u32 {vXb}, {vLane}, 3, 1", f"v_lshlrev_b32 v246, 11, {vB}",
      f"v_lshl_add_u32 v246, {vXb}, 5, v246", f"v_lshl_add_u32 v246, {vG}, 3, v246", "s_lshl_b32 s10, s10, 1", f"v_add_u32 {vX}, s10, v246")
    for u in range(2):
        for t in range(4): I(f"s_mov_b32 s{80+4*u+t}, {t*8192+u*(262144 if ks2 else 131072)}")
    S("s_mov_b32 s62, 8388608", "s_mov_b32 s63, 0x00020000", "s_mov_b32 s70, 8192", "s_mov_b32 s71, 0x00020000")
    if xcd: S("s_and_b32 s4, s2, 7", "s_lshl_b32 s4, s4, 1", "s_bfe_u32 s5, s2, 0x10003", "s_add_u32 s4, s4, s5", "s_lshr_b32 s5, s2, 4")
    else: S("s_lshr_b32 s4, s2, 4", "s_and_b32 s5, s2, 15")
    S("s_lshr_b32 s14, s4, 3", "s_lshl_b32 s14, s14, 4", "s_add_u32 s14, s14, s5", "s_and_b32 s15, s4, 7")
    S("s_cmp_ge_u32 s43, 128", "s_waitcnt lgkmcnt(0)")
    S("s_cselect_b32 s60, s32, s22", "s_cselect_b32 s61, s33, s23", "s_cselect_b32 s68, s26, s16", "s_cselect_b32 s69, s27, s17")
    I(f"buffer_load_dwordx2 v[232:233], {vX}, {sX}, 0 offen", "x")
    if ks2: I(f"buffer_load_dwordx2 v[234:235], {vX}, {sX}, 0 offen offset:64", "x")
    for u in range(2):
        for t in range(4):
            I(f"buffer_load_dwordx4 {vr(WR+16*u+4*t)}, {vWQ}, {sWQ}, s{80+4*u+t} offen nt", f"wq{u}")
    I("s_load_dword s42, s[40:41], 0")
    krot = opt.get("krot", 3)
    if krot & 4: S("s_lshr_b32 s13, s2, 3", "s_add_u32 s13, s13, s2", "s_lshr_b32 s8, s2, 6", "s_add_u32 s13, s13, s8", f"s_add_u32 s13, s13, {sW}", "s_and_b32 s13, s13, 7")
    elif krot & 1: S("s_lshr_b32 s13, s2, 3", f"s_add_u32 s13, s13, {sW}", "s_and_b32 s13, s13, 7")
    else: I(f"s_mov_b32 s13, {sW}")
    S("s_lshl_b32 s6, s4, 21", "s_lshl_b32 s7, s5, 17", "s_add_u32 s7, s7, s6", "s_lshl_b32 s8, s13, 14", "s_add_u32 s7, s7, s8",
      "s_lshl_b32 s9, s5, 15", "s_add_u32 s9, s9, s6", "s_lshl_b32 s8, s13, 12", "s_add_u32 s9, s9, s8", f"s_add_u32 s9, s9, {6144*256}")
    klds = opt.get("klds", 1)
    if klds: S(f"v_lshlrev_b32 v246, 4, {vLane}")
    else: S(f"v_lshlrev_b32 v246, 8, {vN}", f"v_lshl_add_u32 v246, {vG}, 4, v246")
    S(f"v_add_u32 {vKA}, s7, v246", f"v_add_u32 {vKB}, s9, v246",
      f"v_lshl_add_u32 v246, {vG}, 10, v247", f"v_add_u32 {vVA}, s7, v246", f"v_add_u32 {vVB}, s9, v246")
    for (d, s) in ((52,28),(44,18),(48,20),(56,30)):
        S(f"s_mov_b32 s{d}, s{s}", f"s_mov_b32 s{d+1}, s{s+1}", f"s_mov_b32 s{d+2}, 33554432", f"s_mov_b32 s{d+3}, 0x00020000")
    TS_ = ["s21", "s96", "s97", "s98"] if False else ["s28", "s29", "s30", "s31"]
    for j in range(1, 4): I(f"s_mov_b32 s{95+j}, {4096*j}")
    if krot & 2: S("s_lshr_b32 s13, s2, 4", f"s_add_u32 s13, s13, s2", f"s_add_u32 s13, s13, {sW}")
    else: I("s_mov_b32 s13, 0")
    for j in range(4): S(f"s_add_u32 {TS_[j]}, s13, {j}", f"s_and_b32 {TS_[j]}, {TS_[j]}, 3", f"s_lshl_b32 {TS_[j]}, {TS_[j]}, 12")
    if opt.get("b1", 1): I("s_barrier")
    kdone = set()
    def loadKn(n):
        for j in range(5):
            for st in range(4):
                if n > 0 and (j, st) not in kdone:
                    loadK(j, (st,)); n -= 1
    def loadK(j, sts=(0, 1, 2, 3)):
        for st in sts:
            if (j, st) in kdone: continue
            kdone.add((j, st))
            ko = (1024 if klds else 64) * st
            if j == 0: I(f"buffer_load_dwordx4 {vr(KR+4*st)}, {vKB}, {sKB}, 0 offen offset:{ko} nt", "K0")
            else:
                so = TS_[j-1]
                I(f"buffer_load_dwordx4 {vr(KR+16*j+4*st)}, {vKA}, {sKA}, {so} offen offset:{ko} nt", f"K{j}")
    def loadV(j):
        for t in range(4):
            if j == 0: I(f"buffer_load_dwordx4 {vr(VR+4*t)}, {vVB}, {sVB}, 0 offen offset:{256*t} nt", "V0")
            else:
                so = TS_[j-1]
                I(f"buffer_load_dwordx4 {vr(VR+16*j+4*t)}, {vVA}, {sVA}, {so} offen offset:{256*t} nt", f"V{j}")
    WO = 48
    wodone = [0]
    def loadWOn(n):
        k = 0
        while wodone[0] < n:
            u, t = divmod(wodone[0], 4); wodone[0] += 1; k += 1
            I(f"buffer_load_dwordx4 {vr(WO+16*u+4*t)}, {vWO}, {sWO}, s{88+4*u+t} offen nt", f"wo{u}")
        return k
    def loadWO(u): loadWOn(4*(u+1))
    npre = opt.get("npre", 1)
    loadKn(opt.get("kq1", 3))
    S("s_cmp_ge_u32 s14, 16", "s_cselect_b32 s64, s34, s24", "s_cselect_b32 s65, s35, s25", "s_mov_b32 s66, 8388608", "s_mov_b32 s67, 0x00020000")
    if opt.get("worot", 0): S(f"s_add_u32 s33, s2, {sW}", "s_lshr_b32 s32, s2, 3", "s_add_u32 s33, s33, s32", "s_and_b32 s33, s33, 7")
    else: I(f"s_mov_b32 s33, {sW}")
    I("s_lshl_b32 s11, s33, 5")
    S("s_and_b32 s6, s14, 15", "s_lshl_b32 s6, s6, 8", "s_add_u32 s6, s6, s11", "s_lshl_b32 s6, s6, 11", "s_lshl_b32 s7, s15, 8", "s_add_u32 s6, s6, s7")
    S(f"v_lshl_add_u32 v246, {vG}, 13, v247", f"v_add_u32 {vWO}, s6, v246")
    for u in range(2):
        for t in range(4): I(f"s_mov_b32 s{88+4*u+t}, {t*2048+u*32768}")
    S("s_mov_b32 s72, s40", "s_mov_b32 s73, s41", "s_mov_b32 s74, 268435456", "s_mov_b32 s75, 0x00020000")
    S("s_mov_b32 s76, s36", "s_mov_b32 s77, s37", "s_mov_b32 s78, 16384", "s_mov_b32 s79, 0x00020000")
    S(f"s_mov_b32 {sP}, s4", f"s_mov_b32 {sS}, s5", f"s_mov_b32 {sBK}, s14", f"s_mov_b32 {sCB}, s15")
    S(f"v_and_b32 v246, 1, {vLane}", "v_cmp_eq_u32 vcc, 0, v246", "v_mov_b32 v246, 0x01000c0c", "v_mov_b32 v247, 0x0c0c0100",
      f"v_cndmask_b32 {vSE}, v246, v247, vcc", "v_mov_b32 v246, 0x03020c0c", "v_mov_b32 v247, 0x0c0c0302", f"v_cndmask_b32 {vSO}, v246, v247, vcc",
      f"v_cmp_eq_u32 vcc, 0, {vXb}", "v_mov_b32 v246, 0x0c0c0c0c",
      f"v_cndmask_b32 {vSE0}, v246, {vSE}, vcc", f"v_cndmask_b32 {vSO0}, v246, {vSO}, vcc",
      f"v_cndmask_b32 {vSE1}, {vSE}, v246, vcc", f"v_cndmask_b32 {vSO1}, {vSO}, v246, vcc")
    for i in range(4): I(f"s_mov_b32 s{8+i}, {0x07060500+i:#x}")
    S("s_mov_b32 s12, 0x0c0c0400", "s_mov_b32 s13, 0x0c040100", "s_mov_b32 s14, 0x04020100", f"s_mov_b32 {sC}, {f32(SCALE)}")
    S(f"v_lshrrev_b32 v246, 1, {vG}", f"v_lshl_add_u32 v246, {sW}, 1, v246", f"v_mul_u32_u24 v246, {RED_STR}, v246",
      f"v_and_b32 v247, 1, {vG}", "v_lshl_add_u32 v246, v247, 10, v246", f"v_lshl_add_u32 {vRW}, {vN}, 5, v246",
      f"v_bfe_u32 v247, {vN}, 2, 1", f"v_lshl_add_u32 {vRW}, v247, 4, {vRW}",
      f"v_lshrrev_b32 v247, 3, {vN}", f"v_xor_b32 v247, v247, {vN}",
      f"v_mul_u32_u24 v246, {4*RED_STR}, {vG}", f"v_lshl_add_u32 v247, {sW}, 4, v247", f"v_lshl_add_u32 {vRR}, v247, 4, v246")
    if ks2:
        S("s_lshr_b32 s4, s43, 2", "s_and_b32 s4, s4, 31", "s_lshl_b32 s4, s4, 2", f"s_lshr_b32 s5, {sW}, 1", "s_add_u32 s4, s4, s5", f"s_mul_i32 s4, s4, {QP_STR}",
          "s_lshr_b32 s5, s43, 7", "s_lshl_b32 s5, s5, 10", "s_add_u32 s4, s4, s5", "s_and_b32 s5, s43, 1", "s_lshl_b32 s5, s5, 9", "s_add_u32 s4, s4, s5",
          "s_and_b32 s5, s43, 2", "s_lshl_b32 s5, s5, 7", "s_add_u32 s4, s4, s5",
          f"s_and_b32 s5, {sW}, 1", "s_lshl_b32 s6, s5, 7", "s_add_u32 s4, s4, s6", f"s_add_u32 s4, s4, {WS_QP}",
          f"v_and_b32 v247, 7, {vLane}", "v_lshlrev_b32 v246, 4, v247", "v_add_u32 v252, s4, v246")
        S(f"v_lshrrev_b32 v246, 1, {vG}", f"v_lshl_add_u32 v246, {sW}, 1, v246", "v_mul_u32_u24 v246, 1088, v246", f"v_and_b32 v240, 1, {vG}",
          "v_lshl_add_u32 v246, v240, 9, v246", "v_lshl_add_u32 v246, v247, 5, v246", "v_lshrrev_b32 v240, 2, v247", "v_lshl_add_u32 v240, v240, 4, v246",
          f"v_lshrrev_b32 v246, 3, {vLane}", "v_mul_u32_u24 v246, 2176, v246", "v_xor_b32 v241, s5, v247", f"v_lshl_add_u32 v241, {sW}, 3, v241",
          "v_lshl_add_u32 v241, v241, 4, v246")
    else:
        S("s_lshr_b32 s4, s2, 2", "s_and_b32 s4, s4, 31", "s_lshl_b32 s4, s4, 2", f"s_lshr_b32 s5, {sW}, 1", "s_add_u32 s4, s4, s5", f"s_mul_i32 s4, s4, {QP_STR}",
          "s_lshr_b32 s5, s2, 7", "s_lshl_b32 s5, s5, 2", "s_and_b32 s6, s2, 3", "s_add_u32 s5, s5, s6", "s_lshl_b32 s5, s5, 9", "s_add_u32 s4, s4, s5",
          f"s_and_b32 s5, {sW}, 1", "s_lshl_b32 s5, s5, 8", "s_add_u32 s4, s4, s5", f"s_add_u32 s4, s4, {WS_QP}",
          f"v_lshlrev_b32 v246, 4, {vN}", "v_add_u32 v252, s4, v246")
    S(f"s_and_b32 s5, {sP}, 3", "s_lshl_b32 s5, s5, 3", f"s_add_u32 s5, s5, {sW}", "s_lshl_b32 s5, s5, 2",
      f"s_lshr_b32 s4, {sP}, 2", "s_add_u32 s5, s5, s4", f"s_mul_i32 s5, s5, {QP_STR}", f"s_add_u32 s5, s5, {WS_QP}")
    S(f"v_lshlrev_b32 v246, 4, {vLane}", "v_add_u32 v253, s5, v246")
    S("s_waitcnt lgkmcnt(0)", f"s_add_u32 {sEP1}, s42, 1", f"s_mul_i32 {sTAG}, {sEP1}, 0x9e3779b1",
      f"s_lshr_b32 s4, {sTAG}, 15", f"s_xor_b32 {sTAG}, {sTAG}, s4", f"s_mul_i32 {sTAG}, {sTAG}, 0x85ebca6b",
      f"s_lshr_b32 s4, {sTAG}, 13", f"s_xor_b32 {sTAG}, {sTAG}, s4", f"v_mov_b32 {vT}, {sTAG}")
    S("s_getreg_b32 s25, hwreg(HW_REG_XCC_ID)", f"s_mul_i32 s26, {sP}, {XT_STR}", f"s_add_u32 s26, s26, {WS_XT}")
    S(f"s_cmp_lg_u32 {sW}, 0", "s_cbranch_scc1 L_noxt")
    S(f"s_lshl_b32 s4, {sS}, 3", "s_add_u32 s4, s4, s26", "v_mov_b32 v246, s4", f"v_mov_b32 v{SR}, s25", f"v_mov_b32 v{SR+1}, {sTAG}", "s_mov_b64 exec, 1")
    I0(f"buffer_store_dwordx2 {vr(SR,2)}, v246, {sWS}, 0 offen sc1"); A.vm.pop()
    I("s_mov_b64 exec, -1")
    A.label("L_noxt")

    A.wait_vm("x")
    if ks2:
        for u in range(2):
            S(f"v_perm_b32 v{224+4*u}, v{232+2*u}, v{232+2*u}, {vSE}", f"v_perm_b32 v{225+4*u}, v{232+2*u}, v{232+2*u}, {vSO}",
              f"v_perm_b32 v{226+4*u}, v{233+2*u}, v{233+2*u}, {vSE}", f"v_perm_b32 v{227+4*u}, v{233+2*u}, v{233+2*u}, {vSO}")
    else: afrags(232, 224)
    for u in range(2):
        A.wait_vm(f"wq{u}"); transpose(WR+16*u); projmm(WR, 224, SR, u)
    stamp("wq arrived")
    npre2 = npre
    if ks2:
        d = SR
        S("v_xor_b32 v243, 16, v240", "s_mov_b32 exec_lo, 0x00ff00ff", "s_mov_b32 exec_hi, 0xff00ff00")
        I(f"ds_write2_b64 v240, {vr(d,2)}, {vr(d+4,2)} offset0:0 offset1:1")
        I(f"ds_write2_b64 v240, {vr(d+2,2)}, {vr(d+6,2)} offset0:32 offset1:33")
        I(f"ds_write2_b64 v243, {vr(d+8,2)}, {vr(d+12,2)} offset0:0 offset1:1")
        I(f"ds_write2_b64 v243, {vr(d+10,2)}, {vr(d+14,2)} offset0:32 offset1:33")
        I("s_mov_b64 exec, -1")
        loadKn(opt.get("kq2", 3))
        barrier()
        S(f"ds_read_b128 {vr(d)}, v241", f"ds_read_b128 {vr(d+4)}, v241 offset:1088", "s_waitcnt lgkmcnt(0)",
          f"v_pk_add_f32 {vr(d,2)}, {vr(d,2)}, {vr(d+4,2)}", f"v_pk_add_f32 {vr(d+2,2)}, {vr(d+2,2)}, {vr(d+6,2)}")
        for j in range(4): dpp("v_add_f32", d+j, "row_ror:8")
        xrow(d)
        tag4(d)
        I("s_mov_b64 exec, 0xff")
        I(f"buffer_store_dwordx4 {vr(d)}, v252, {sWS}, 0 offen sc1", "qst")
        I("s_mov_b64 exec, -1")
    else:
        write_acc(vRW, SR)
        barrier()
        red_publish(SR, "v252", "qst")
    I("s_barrier")
    stamp("q published")
    for j in range(5): loadK(j)
    def gatherQ(tag):
        for i in range(2 if ks2 else 4): I(f"buffer_load_dwordx4 {vr(GR+(8 if ks2 else 4)*i)}, v253, {sWS}, 0 offen offset:{1024*i} sc1", tag)
    S(f"v_lshlrev_b32 v242, 3, {vN}", "v_add_u32 v242, s26, v242")
    def issueG():
        I0(f"buffer_load_dwordx2 {vr(SR,2)}, v242, {sWS}, 0 offen sc1", "G")
        gatherQ("G")
    gpos = opt.get("gpos", 0)
    if gpos == 0: issueG()
    S(f"s_lshl_b32 s4, {sW}, 13", f"s_add_u32 s4, s4, {L_OB}")
    for st in range(4):
        S(f"v_add_u32 v246, {4*st}, {vG}", f"v_xor_b32 v247, v246, {vN}", "v_lshlrev_b32 v247, 4, v247")
        I(f"v_lshl_add_u32 v{SR+4+st}, v246, 8, v247")
        I(f"v_lshl_add_u32 v{SR+8+st}, {vN}, 8, v247")
        I(f"v_add_u32 v{SR+4+st}, s4, v{SR+4+st}"); I(f"v_add_u32 v{SR+8+st}, s4, v{SR+8+st}")
    def ktrans():
        for j in range(5):
            A.wait_vm(f"K{j}")
            for st in range(4): I(f"ds_write_b128 v{SR+4+st}, {vr(KR+16*j+4*st)} offset:{4096*(j&1)}")
            for st in range(4): I(f"ds_read_b128 {vr(KR+16*j+4*st)}, v{SR+8+st} offset:{4096*(j&1)}")
    tearly = opt.get("tearly", 1)
    if tearly:
        S(f"s_cmp_ge_u32 {sW}, 4", "s_cbranch_scc1 L_tskip")
        ktrans()
        A.label("L_tskip")
    I("s_barrier")
    if gpos == 1: issueG()
    nv1 = opt.get("nv1", 1)
    for j in range(nv1): loadV(j)
    if gpos == 2: issueG()
    S(f"v_lshrrev_b32 v246, 5, {vLane}", f"v_mul_u32_u24 v246, {Q_BS}, v246", f"v_and_b32 v247, 31, {vLane}", "v_lshl_add_u32 v246, v247, 3, v246",
      f"s_mul_i32 s4, {sW}, {Q_HS}", "v_add_u32 v252, s4, v246")
    S(f"v_lshrrev_b32 v247, 1, {vN}", f"v_mul_u32_u24 v247, {Q_HS}, v247", f"v_lshl_add_u32 v254, {vG}, 4, v247")
    if tearly:
        S(f"s_cmp_lt_u32 {sW}, 4", "s_cbranch_scc1 L_tdone")
        ktrans()
        A.label("L_tdone")
    else: ktrans()
    I("s_mov_b32 s15, 0")
    A.wait_vm("G")
    stamp("G arrived")
    S(f"v_cmp_ne_u32 s[6:7], s25, v{SR}", f"v_cmp_ne_u32 vcc, {vT}, v{SR+1}", "s_or_b64 s[6:7], s[6:7], vcc", "s_cmp_eq_u64 s[6:7], 0", "s_cselect_b32 s22, 1, 0")
    if opt.get("noloc"): I("s_mov_b32 s22, 0")
    A.label("L_qchk")
    for i in range(2 if ks2 else 4): chk4(GR+(8 if ks2 else 4)*i, "v246", i == 0)
    if opt.get("noq"): I("s_mov_b64 s[6:7], 0")
    S("s_cmp_eq_u64 s[6:7], 0", "s_cbranch_scc1 L_qok", "s_add_u32 s15, s15, 1", "s_cmp_gt_u32 s15, 1000000", "s_cbranch_scc1 L_qok")
    nvm = len(A.vm)
    gatherQ("G2")
    S("s_waitcnt vmcnt(0)", "s_branch L_qchk")
    del A.vm[nvm:]
    A.label("L_qok")
    stamp("G ok")
    if ts: S("s_lshl_b32 s4, s15, 1", "s_add_u32 s4, s4, s22", "s_add_u32 s4, s4, 1", f"v_writelane_b32 {vTS}, s4, 30")
    for i in range(2 if ks2 else 4): untag4(GR+(8 if ks2 else 4)*i)
    for j in range(0, 0 if ks2 else 4, 2):
        I(f"v_pk_add_f32 {vr(GR+j,2)}, {vr(GR+j,2)}, {vr(GR+4+j,2)}")
        I(f"v_pk_add_f32 {vr(GR+8+j,2)}, {vr(GR+8+j,2)}, {vr(GR+12+j,2)}")
    for j in range(4): I(f"v_permlane32_swap_b32 v{GR+j}, v{GR+8+j}")
    for j in range(0, 4, 2): I(f"v_pk_add_f32 {vr(GR+j,2)}, {vr(GR+j,2)}, {vr(GR+8+j,2)}")
    S(f"v_cvt_pk_bf16_f32 v{GR}, v{GR}, v{GR+1}", f"v_cvt_pk_bf16_f32 v{GR+1}, v{GR+2}, v{GR+3}")
    I(f"ds_write_b64 v252, {vr(GR,2)} offset:{L_Q}")
    barrier()
    QA, QB = WR, WR+16
    for st in range(4): I(f"ds_read_b128 {vr(QB+4*st)}, v254 offset:{L_Q+Q_BS+64*st}")
    for st in range(4): I(f"ds_read_b128 {vr(QA+4*st)}, v254 offset:{L_Q+64*st}")
    S(f"v_lshrrev_b32 v246, 5, {vLane}", f"v_lshl_add_u32 v246, v246, 4, {vN}", "v_lshlrev_b32 v246, 5, v246",
      f"v_lshl_add_u32 v253, {sW}, 2, v246", f"v_lshlrev_b32 v252, 5, {vN}")
    I("s_waitcnt lgkmcnt(0)")
    for st in range(4):
        for j in range(5):
            q = QB if j == 0 else QA
            c = "0" if st == 0 else vr(SR+4*j)
            I(f"v_mfma_f32_16x16x32_bf16 {vr(SR+4*j)}, {vr(KR+16*j+4*st)}, {vr(q+4*st)}, {c}")
    nvq = opt.get("nvq", 2)
    for u in range(opt.get("woearly", 0)): loadWO(u)
    for j in range(nv1, nvq): loadV(j)
    stamp("QK done")
    TM = 80
    mA, mB = f"v{TM}", f"v{TM+1}"
    S(f"v_max3_f32 {mB}, v{SR}, v{SR+1}, v{SR+2}", f"v_max_f32 {mB}, {mB}, v{SR+3}", f"v_max3_f32 {mA}, v{SR+4}, v{SR+5}, v{SR+6}")
    for k in range(SR+7, SR+19, 2): I(f"v_max3_f32 {mA}, {mA}, v{k}, v{k+1}")
    I(f"v_max_f32 {mA}, {mA}, v{SR+19}")
    def xreduce(a, b, op, t):
        S(f"v_permlane32_swap_b32 {a}, {b}", f"{op} {a}, {a}, {b}", f"v_mov_b32 {t}, {a}", f"v_permlane16_swap_b32 {a}, {t}", f"{op} {a}, {a}, {t}")
    xreduce(mA, mB, "v_max_f32", f"v{TM+2}")
    I(f"ds_write_b32 v253, {mA} offset:{L_MX}")
    barrier()
    R = WR
    for k in range(4): I(f"ds_read_b128 {vr(R+4*k)}, v252 offset:{L_MX+(k>>1)*512+(k&1)*16}")
    I("s_waitcnt lgkmcnt(0)")
    for (m, b) in ((mA, R), (mB, R+8)):
        S(f"v_max3_f32 {m}, v{b}, v{b+1}, v{b+2}", f"v_max3_f32 {m}, {m}, v{b+3}, v{b+4}", f"v_max3_f32 {m}, {m}, v{b+5}, v{b+6}", f"v_max_f32 {m}, {m}, v{b+7}")
    S(f"v_mul_f32 {mA}, {sC}, {mA}", f"v_mul_f32 {mB}, {sC}, {mB}")
    for k in range(20):
        I(f"v_fma_f32 v{SR+k}, v{SR+k}, {sC}, -{mB if k < 4 else mA}")
    for k in range(20): I(f"v_exp_f32 v{SR+k}, v{SR+k}")
    lA, lB = f"v{TM+4}", f"v{TM+5}"
    S(f"v_add_f32 {lB}, v{SR}, v{SR+1}", f"v_add_f32 {lB}, {lB}, v{SR+2}", f"v_add_f32 {lB}, {lB}, v{SR+3}", f"v_add_f32 {lA}, v{SR+4}, v{SR+5}")
    for k in range(6, 20): I(f"v_add_f32 {lA}, {lA}, v{SR+k}")
    xreduce(lA, lB, "v_add_f32", f"v{TM+2}")
    I(f"ds_write_b32 v253, {lA} offset:{L_LS}")
    S(f"s_lshl_b32 s4, {sW}, 1", f"v_readlane_b32 s42, {mA}, s4", f"v_readlane_b32 s43, {mB}, s4")
    for j in range(5):
        b = SR+4*j
        S(f"v_cvt_pk_bf16_f32 v{TM+6}, v{b}, v{b+1}", f"v_cvt_pk_bf16_f32 v{TM+7}, v{b+2}, v{b+3}",
          f"v_perm_b32 v{b}, v{TM+6}, v{TM+6}, {vSE}", f"v_perm_b32 v{b+1}, v{TM+6}, v{TM+6}, {vSO}",
          f"v_perm_b32 v{b+2}, v{TM+7}, v{TM+7}, {vSE}", f"v_perm_b32 v{b+3}, v{TM+7}, v{TM+7}, {vSO}")
    stamp("softmax done")
    nv2 = opt.get("nv2", 4)
    for j in range(nvq, nv2): loadV(j)
    OA, OB = 16, 32
    def pv(j, O, first):
        A.wait_vm(f"V{j}")
        transpose(VR+16*j)
        for r in range(4):
            c = "0" if first else vr(O+4*r)
            I(f"v_mfma_f32_16x16x32_bf16 {vr(O+4*r)}, {vr(SR+4*j)}, {vr(VR+16*j+4*r)}, {c}")
    vOW, vOR, vOS, vLSs, vLSr = [f"v{TM+8+i}" for i in range(5)]
    S(f"s_mul_i32 s4, {sW}, {O_STR}", f"v_lshlrev_b32 v246, 10, {vG}", f"v_lshl_add_u32 v246, {vN}, 5, v246", f"v_bfe_u32 v247, {vN}, 2, 1", "v_lshl_add_u32 v246, v247, 4, v246", f"v_add_u32 {vOW}, s4, v246",
      f"v_lshrrev_b32 v246, 3, {vN}", f"v_and_b32 v247, 31, {vLane}", "v_xor_b32 v247, v247, v246",
      f"v_lshrrev_b32 v246, 5, {vLane}", f"v_mul_u32_u24 v246, {4*O_STR}, v246", f"v_lshl_add_u32 v247, {sW}, 5, v247", f"v_lshl_add_u32 {vOR}, v247, 4, v246")
    S(f"s_lshl_b32 s5, {sP}, 17", f"s_lshl_b32 s6, {sW}, 13", "s_add_u32 s5, s5, s6", f"s_lshl_b32 s7, {sS}, 8", "s_add_u32 s5, s5, s7", f"s_add_u32 s5, s5, {WS_OP}")
    S(f"v_and_b32 v246, 1, {vG}", "v_lshlrev_b32 v246, 12, v246", f"v_lshl_add_u32 v246, {vN}, 4, v246", f"v_add_u32 {vOS}, s5, v246")
    S(f"s_lshl_b32 s5, {sP}, 4", f"s_add_u32 s5, s5, {sW}", f"s_mul_i32 s5, s5, {LSE_STR}", f"s_lshl_b32 s7, {sS}, 3", "s_add_u32 s5, s5, s7",
      f"s_add_u32 s5, s5, {WS_LSE}", f"v_mov_b32 {vLSs}, s5", f"s_lshl_b32 s4, {sW}, 6", f"v_mov_b32 {vLSr}, s4",
      "s_mov_b32 s20, 65536", f"s_mov_b32 s21, {8*LSE_STR}")
    def publishO(br, O, Lb):
        I(f"v_add_u32 v246, {Lb}, {vOW}")
        write_acc("v246", O)
        I(f"v_add_u32 v247, {Lb}, {vOR}")
        if br == 0 and opt.get("wolate", 0) == 5:
            for u in range(opt.get("wosplit", 0)): loadWO(u)
        barrier()
        for j in range(4): I(f"ds_read_b128 {vr(R+4*j)}, v247 offset:{j*O_STR}")
        for k in range(2): I(f"ds_read_b128 {vr(R+16+4*k)}, {vLSr} offset:{L_LS+br*512+16*k}")
        I("s_waitcnt lgkmcnt(0)")
        I(f"v_pk_add_f32 {vr(R+16,2)}, {vr(R+16,2)}, {vr(R+18,2)}")
        I(f"v_pk_add_f32 {vr(R+20,2)}, {vr(R+20,2)}, {vr(R+22,2)}")
        I(f"v_pk_add_f32 {vr(R+16,2)}, {vr(R+16,2)}, {vr(R+20,2)}")
        I(f"v_add_f32 v{R+16}, v{R+16}, v{R+17}")
        S(f"v_rcp_f32 v{R+18}, v{R+16}", f"v_log_f32 v{R+20}, v{R+16}")
        sum4(R)
        S(f"v_add_f32 v{R+20}, s{42+br}, v{R+20}", f"v_mov_b32 v{R+21}, {vT}")
        S(f"v_permlane32_swap_b32 v{R}, v{R+1}", f"v_permlane32_swap_b32 v{R+2}, v{R+3}",
          f"v_add_f32 v{R}, v{R}, v{R+1}", f"v_add_f32 v{R+2}, v{R+2}, v{R+3}",
          f"v_mul_f32 v{R}, v{R}, v{R+18}", f"v_mul_f32 v{R+2}, v{R+2}, v{R+18}",
          f"v_mov_b32 v{R+1}, v{R}", f"v_mov_b32 v{R+3}, v{R+2}",
          f"v_permlane32_swap_b32 v{R}, v{R+1}", f"v_permlane32_swap_b32 v{R+2}, v{R+3}")
        tag4(R)
        lstore([(["s_mov_b32 exec_lo, -1", "s_mov_b32 exec_hi, 0"], f"buffer_store_dwordx4 {vr(R)}, {vOS}, {sWS}, {'0' if br == 0 else 's20'} offen", f"ost{br}"),
                (["s_mov_b64 exec, 1"], f"buffer_store_dwordx2 {vr(R+20,2)}, {vLSs}, {sWS}, {'0' if br == 0 else 's21'} offen", f"ost{br}")])
    pv(0, OB, True)
    publishO(1, OB, L_OB)
    if nv2 < 5: I("s_barrier")
    stamp("B published")
    for j in range(nv2, 5): loadV(j)
    wosplit = opt.get("woearly", 0)
    wolate = 0
    vCS, vOCg = vVB, vWQ
    S(f"s_lshl_b32 s4, {sP}, 1", f"s_and_b32 s5, {sW}, 1", "s_add_u32 s4, s4, s5",
      "s_lshl_b32 s6, s4, 4", f"s_add_u32 s6, s6, {sS}", "s_lshl_b32 s6, s6, 12", f"s_add_u32 s6, s6, {WS_OP}",
      f"v_lshlrev_b32 v246, 4, {vLane}", "v_add_u32 v252, s6, v246",
      "s_lshl_b32 s6, s4, 3", f"s_lshr_b32 s7, {sS}, 1", "s_add_u32 s6, s6, s7", f"s_mul_i32 s6, s6, {LSE_STR}", f"s_add_u32 s6, s6, {WS_LSE}",
      f"v_lshlrev_b32 v246, 3, {vN}", "v_add_u32 v253, s6, v246")
    S("s_lshl_b32 s6, s5, 7", f"s_and_b32 s7, {sP}, 3", "s_lshl_b32 s7, s7, 5", "s_add_u32 s6, s6, s7", f"s_lshl_b32 s7, {sS}, 1", "s_add_u32 s6, s6, s7",
      f"s_mul_i32 s6, s6, {OC_STR}", f"s_lshr_b32 s7, {sP}, 2", "s_lshl_b32 s7, s7, 7", "s_add_u32 s6, s6, s7", f"s_add_u32 s6, s6, {WS_OC}",
      f"v_lshrrev_b32 v246, 3, {vN}", f"v_mul_u32_u24 v246, {OC_STR}, v246", f"v_and_b32 v247, 7, {vN}", "v_lshl_add_u32 v246, v247, 4, v246", f"v_add_u32 {vCS}, s6, v246")
    I(f"v_lshlrev_b32 v254, 2, {vG}")
    S(f"s_lshl_b32 s6, {sBK}, 3", f"s_add_u32 s6, s6, s33", f"s_mul_i32 s6, s6, {OC_STR}", f"s_add_u32 s6, s6, {WS_OC}",
      f"v_and_b32 v246, 31, {vLane}", "v_lshlrev_b32 v246, 4, v246", f"v_add_u32 {vOCg}, s6, v246",
      f"v_lshlrev_b32 v246, 5, {vB}", f"v_lshl_add_u32 v246, {vXb}, 4, v246", f"v_lshl_add_u32 {vX}, {vG}, 2, v246")
    vFS, vFG = vKA, vKB
    S(f"s_lshr_b32 s4, {sBK}, 4", "s_lshl_b32 s4, s4, 3", f"s_add_u32 s4, s4, {sCB}", "s_lshl_b32 s4, s4, 4",
      f"s_and_b32 s5, {sBK}, 15", f"s_lshl_b32 s6, {sW}, 1", "s_add_u32 s6, s6, s4", f"s_mul_i32 s6, s6, {FP_STR}",
      "s_lshl_b32 s7, s5, 7", "s_add_u32 s6, s6, s7", f"s_add_u32 s6, s6, {WS_FP}")
    S(f"v_lshrrev_b32 v246, 3, {vN}", f"v_mul_u32_u24 v246, {FP_STR}, v246", f"v_and_b32 v247, 7, {vN}", "v_lshl_add_u32 v246, v247, 4, v246", f"v_add_u32 {vFS}, s6, v246")
    S("s_add_u32 s6, s4, s5", f"s_mul_i32 s6, s6, {FP_STR}", f"s_add_u32 s6, s6, {WS_FP}")
    S(f"v_lshlrev_b32 v246, 4, {vLane}", f"v_add_u32 {vFG}, s6, v246")
    if opt.get("pretouch"):
        pm = opt["pretouch"].replace("_", " ")
        S(f"s_cmp_gt_u32 {sW}, 1", "s_cbranch_scc1 L_npt")
        I0(f"buffer_load_dwordx2 {vr(WO,2)}, v253, {sWS}, 0 offen {pm}"); A.vm.pop()
        for i in range(4):
            I0(f"buffer_load_dwordx4 {vr(WO)}, v252, {sWS}, 0 offen offset:{1024*i} {pm}"); A.vm.pop()
        A.label("L_npt")
    for j in range(1, 5):
        pv(j, OA, j == 1)
        if wolate == j:
            for u in range(wosplit): loadWO(u)
    stamp("PV done")
    DG, LG, TT = 96, 112, 144
    prepoll = opt.get("prepoll", 0)
    if prepoll:
        S(f"s_cmp_gt_u32 {sW}, 1", "s_cbranch_scc1 L_npp")
        I(f"buffer_load_dwordx2 {vr(LG,2)}, v253, {sWS}, 0 offen sc1"); A.vm.pop()
        A.label("L_npp")
    publishO(0, OA, L_OA)
    I("s_barrier")
    stamp("A published")
    DG, LG, TT = 96, 112, 144
    cgm = opt.get("cgm", "sc1_nt").replace("_", " ")
    def cgather():
        I(f"buffer_load_dwordx2 {vr(LG,2)}, v253, {sWS}, 0 offen {cgm}")
        for i in range(4): I(f"buffer_load_dwordx4 {vr(DG+4*i)}, v252, {sWS}, 0 offen offset:{1024*i} {cgm}")
    womid = max(opt.get("womid", 1), wosplit)
    S("s_mov_b32 s23, 0", "s_mov_b32 s24, 0", "s_mov_b32 s15, 0", (f"s_cmp_gt_u32 {sW}, 1" if not opt.get("abl",0)&1 else "s_cmp_eq_u32 s2, s2"), "s_cbranch_scc1 L_cng")
    if prepoll:
        S("s_waitcnt vmcnt(2)", f"v_cmp_ne_u32 vcc, v{LG+1}, {vT}", f"v_cmp_ne_u32 s[6:7], {sS}, {vN}", "s_and_b64 vcc, vcc, s[6:7]",
          "s_mov_b32 s24, 1", "s_cbranch_vccnz L_cng", "s_mov_b32 s24, 0")
    nvm = len(A.vm); cgather(); del A.vm[nvm:]
    A.label("L_cng")
    nmid = loadWOn(opt.get("wom8", 5))
    S((f"s_cmp_gt_u32 {sW}, 1" if not opt.get("abl",0)&1 else "s_cmp_eq_u32 s2, s2"), "s_cbranch_scc1 L_cskip")
    S("s_cmp_lg_u32 s24, 0", "s_cbranch_scc1 L_cskip")
    I(f"s_waitcnt vmcnt({nmid})")
    I("s_branch L_cchk")
    nvm = len(A.vm)
    A.label("L_c")
    S("s_add_u32 s15, s15, 1", "s_cmp_gt_u32 s15, 1000000", "s_cbranch_scc1 L_cdo")
    if opt.get("slp", 0): I(f"s_sleep {opt.get('slp', 0)}")
    if not opt.get("fullretry", 1):
        I(f"buffer_load_dwordx2 {vr(LG,2)}, v253, {sWS}, 0 offen sc1")
        S("s_waitcnt vmcnt(0)", f"v_cmp_ne_u32 vcc, v{LG+1}, {vT}", "s_cbranch_vccnz L_c")
    cgather()
    I("s_waitcnt vmcnt(0)")
    A.label("L_cchk")
    if ts and opt.get("cst"):
        k0 = nts[0]; nts[0] = 20
        S("s_cmp_lg_u32 s15, 0", "s_cbranch_scc1 L_cst1"); stamp("first gather back"); A.label("L_cst1")
        nts[0] = 21; stamp("last gather back")
        I(f"v_writelane_b32 {vTS}, s15, 22")
        nts[0] = k0
    for i in range(4): chk4(DG+4*i, "v246", i == 0)
    S(f"v_cmp_ne_u32 vcc, v{LG+1}, {vT}", "s_or_b64 s[6:7], s[6:7], vcc", "s_cmp_eq_u64 s[6:7], 0", "s_cbranch_scc1 L_cdo")
    if not opt.get("cwait", 1): S("s_mov_b32 s24, 1", "s_cmp_eq_u32 s23, 0", "s_cbranch_scc1 L_cskip")
    I("s_branch L_c")
    A.label("L_cdo")
    I(f"v_mov_b32 v{TT}, v{LG}")
    for k in (8, 4, 2, 1): dpp("v_max_f32", TT, f"row_ror:{k}")
    S(f"v_sub_f32 v{LG}, v{LG}, v{TT}", f"v_exp_f32 v{LG}, v{LG}", f"v_mov_b32 v{TT+1}, v{LG}")
    for k in (8, 4, 2, 1): dpp("v_add_f32", TT+1, f"row_ror:{k}")
    S(f"v_rcp_f32 v{TT+1}, v{TT+1}", f"v_mul_f32 v{LG}, v{LG}, v{TT+1}")
    for i in range(4): I(f"ds_bpermute_b32 v{LG+2+i}, v254, v{LG} offset:{16*i}")
    for i in range(4): untag4(DG+4*i)
    I("s_waitcnt lgkmcnt(0)")
    AC = TT+4
    for j in range(4): I(f"v_mul_f32 v{AC+j}, v{LG+2}, v{DG+j}")
    for i in range(1, 4):
        for j in range(4): I(f"v_fmac_f32 v{AC+j}, v{LG+2+i}, v{DG+4*i+j}")
    xrow(AC)
    tag4(AC)
    I("s_mov_b64 exec, 0xffff")
    I(f"buffer_store_dwordx4 {vr(AC)}, {vCS}, {sWS}, 0 offen sc1")
    I("s_mov_b64 exec, -1")
    if ts and opt.get("cst"):
        k0 = nts[0]; nts[0] = 23; stamp("OC stored"); nts[0] = k0
    S("s_mov_b32 s24, 0", "s_cmp_lg_u32 s23, 0", "s_cbranch_scc1 L_cend")
    del A.vm[nvm:]
    A.label("L_cskip")
    I("s_barrier")
    stamp("C1 done")
    OG, OG0 = 120, 124
    early = opt.get("early", 0) and womid < 2 and opt.get("cwait", 1)
    if early: I(f"buffer_load_dwordx4 {vr(OG0)}, {vOCg}, {sWS}, 0 offen sc1", "GO0")
    loadWOn(8)
    S("s_mov_b32 s23, 1", "s_cmp_lg_u32 s24, 0", "s_cbranch_scc1 L_c")
    A.label("L_cend")
    if opt.get("fpt", 1):
        S(f"s_cmp_lg_u32 {sW}, 0", "s_cbranch_scc1 L_nfpt")
        fpm = opt.get("fpm", "sc1").replace("_", " ")
        I0(f"buffer_load_dwordx4 v[128:131], {vFG}, {sWS}, 0 offen {fpm}"); A.vm.pop()
        I0(f"buffer_load_dwordx4 v[128:131], {vFG}, {sWS}, 0 offen offset:1024 {fpm}"); A.vm.pop()
        A.label("L_nfpt")
    I(f"buffer_load_dwordx4 {vr(OG)}, {vOCg}, {sWS}, 0 offen sc1", "GO")
    def ofrags(og):
        untag4(og)
        S(f"v_cvt_pk_bf16_f32 v{TT+10}, v{og}, v{og+1}", f"v_cvt_pk_bf16_f32 v{TT+11}, v{og+2}, v{og+3}",
          f"ds_bpermute_b32 v{TT+8}, {vX}, v{TT+10}", f"ds_bpermute_b32 v{TT+9}, {vX}, v{TT+11}", "s_waitcnt lgkmcnt(0)")
        afrags(TT+8, 224)
    A.wait_vm("wo0"); transpose(WO)
    if early:
        A.wait_vm("GO0")
        chk4(OG0, "v246", True)
        S("s_cmp_eq_u64 s[6:7], 0", "s_cbranch_scc0 L_late")
        ofrags(OG0)
        projmm(WO, 224, SR, 0)
        A.wait_vm("wo1"); transpose(WO+16)
        projmm(WO, 224, SR, 1)
        I("s_branch L_pdone")
        A.label("L_late")
    A.wait_vm("wo1"); transpose(WO+16)
    stamp("wo arrived")
    I("s_mov_b32 s15, 0")
    A.wait_vm("GO")
    A.label("L_ochk")
    chk4(OG, "v246", True)
    if opt.get("abl",0)&2: I("s_mov_b64 s[6:7], 0")
    S("s_cmp_eq_u64 s[6:7], 0", "s_cbranch_scc1 L_ook", "s_add_u32 s15, s15, 1", "s_cmp_gt_u32 s15, 1000000", "s_cbranch_scc1 L_ook")
    nvm = len(A.vm)
    I(f"buffer_load_dwordx4 {vr(OG)}, {vOCg}, {sWS}, 0 offen sc1")
    S("s_waitcnt vmcnt(0)", "s_branch L_ochk")
    del A.vm[nvm:]
    A.label("L_ook")
    ofrags(OG)
    for u in range(2): projmm(WO, 224, SR, u)
    A.label("L_pdone")
    stamp("GO ok")
    write_acc(vRW, SR)
    barrier()
    red_publish(SR, vFS, "fst", local=True)
    stamp("F published")
    S(f"s_cmp_lg_u32 {sW}, 0", "s_cbranch_scc1 L_fin")
    S(f"s_and_b32 s4, {sBK}, 15", "s_lshr_b32 s5, s4, 2", "s_lshl_b32 s5, s5, 12", "s_and_b32 s4, s4, 3", "s_lshl_b32 s4, s4, 6", "s_add_u32 s5, s5, s4",
      f"s_lshr_b32 s4, {sBK}, 4", "s_lshl_b32 s4, s4, 11", "s_add_u32 s5, s5, s4", f"s_lshl_b32 s4, {sCB}, 8", "s_add_u32 s5, s5, s4")
    S(f"v_and_b32 v252, 7, {vLane}", "v_lshlrev_b32 v252, 3, v252", f"v_and_b32 v247, 1, {vG}", "v_lshl_add_u32 v252, v247, 2, v252",
      f"v_lshrrev_b32 v247, 1, {vG}", "v_lshl_add_u32 v252, v247, 1, v252", "v_add_u32 v252, s5, v252")
    I("s_mov_b32 s15, 0")
    A.label("L_fl")
    if opt.get("slpf", 0): I(f"s_sleep {opt.get('slpf')}")
    fgm = opt.get("fgm", "sc1_nt").replace("_", " ")
    I(f"buffer_load_dwordx4 {vr(DG)}, {vFG}, {sWS}, 0 offen {fgm}")
    I(f"buffer_load_dwordx4 {vr(DG+4)}, {vFG}, {sWS}, 0 offen offset:1024 {fgm}")
    I("s_waitcnt vmcnt(0)")
    chk4(DG, "v246", True); chk4(DG+4, "v246", False)
    if opt.get("abl",0)&4: I("s_mov_b64 s[6:7], 0")
    S("s_cmp_eq_u64 s[6:7], 0", "s_cbranch_scc1 L_fok", "s_add_u32 s15, s15, 1", "s_cmp_gt_u32 s15, 1000000", "s_cbranch_scc0 L_fl")
    A.label("L_fok")
    stamp("F ok")
    untag4(DG); untag4(DG+4)
    S(f"v_pk_add_f32 {vr(DG,2)}, {vr(DG,2)}, {vr(DG+4,2)}", f"v_pk_add_f32 {vr(DG+2,2)}, {vr(DG+2,2)}, {vr(DG+6,2)}",
      f"v_permlane32_swap_b32 v{DG}, v{DG+1}", f"v_permlane32_swap_b32 v{DG+2}, v{DG+3}",
      f"v_add_f32 v{DG}, v{DG}, v{DG+1}", f"v_add_f32 v{DG+2}, v{DG+2}, v{DG+3}",
      f"v_permlane16_swap_b32 v{DG}, v{DG+2}", f"v_add_f32 v{DG}, v{DG}, v{DG+2}")
    dpp("v_add_f32", DG, "row_ror:8")
    I(f"v_cvt_pk_bf16_f32 v{DG}, v{DG}, v{DG}")
    S("s_mov_b32 exec_lo, 0x00ff00ff", "s_mov_b32 exec_hi, 0x00ff00ff")
    I(f"buffer_store_short v{DG}, v252, {sOUT}, 0 offen")
    S("s_mov_b64 exec, -1", "s_cmp_lg_u32 s2, 0", "s_cbranch_scc1 L_fin")
    S("v_mov_b32 v246, 0", f"v_mov_b32 v247, {sEP1}", "s_mov_b64 exec, 1")
    I(f"buffer_store_dword v247, v246, {sWS}, 0 offen")
    I("s_mov_b64 exec, -1")
    A.label("L_fin")
    if ts and opt.get("dbg"):
        nts[0] = 14; stamp("end")
        S(f"v_readlane_b32 s4, {vTS}, 0", "s_not_b32 s4, s4", f"v_writelane_b32 {vTS}, s4, 15")
        S("s_mov_b32 s20, s38", "s_mov_b32 s21, s39", "s_mov_b32 s22, 256", "s_mov_b32 s23, 0x00020000")
        S(f"v_lshlrev_b32 v246, 2, {vLane}", "s_mov_b64 exec, 0xffff")
        I(f"buffer_atomic_umax {vTS}, v246, s[20:23], 0 offen")
    elif ts:
        nts[0] = 31; stamp("end")
        S("s_lshl_b32 s4, s2, 3", f"s_add_u32 s4, s4, {sW}", "s_lshl_b32 s4, s4, 7", f"s_add_u32 s4, s4, {WS_TS}",
          f"v_lshlrev_b32 v246, 2, {vLane}", "v_add_u32 v246, s4, v246", "s_mov_b32 exec_lo, -1", "s_mov_b32 exec_hi, 0")
        I(f"buffer_store_dword {vTS}, v246, {sWS}, 0 offen")
    A.raw("L_end:")
    I("s_endpgm")
    A.raw(f""".section .rodata,"a"
.p2align 6
.amdhsa_kernel {NAME}_kernel
  .amdhsa_next_free_vgpr 256
  .amdhsa_next_free_sgpr 102
  .amdhsa_accum_offset 256
  .amdhsa_group_segment_fixed_size 0
  .amdhsa_kernarg_size 104
  .amdhsa_user_sgpr_count 2
  .amdhsa_user_sgpr_kernarg_segment_ptr 1
  .amdhsa_system_sgpr_workgroup_id_x 1
.end_amdhsa_kernel""")
    return A.text()

if __name__ == "__main__":
    ts = "--ts" in sys.argv
    out = sys.argv[1]
    opt = {}
    for a in sys.argv[2:]:
        if "=" in a:
            k, v = a.split("="); opt[k] = int(v) if v.isdigit() else v
    open(out, "w").write(gen(ts=ts, opt=opt))
```

```python
import sys, struct
sys.path.insert(0, "dev")
from asmlib import Asm
NAME = "concat_heads__gqa_block_cached__sliding_block_cached__decode"
HEADER = open("cdna_kernels/" + NAME + ".s.ref").read().split("; Override launch geometry")[0]

WS_OP = 0x200000; WS_QP = 0x400000; WS_LSE = 0x700000; WS_FP = 0xA00000; WS_OC = 0xD00000; WS_XT = 0x1000; WS_TS = 0x1000000
QP_STR = 0x5000; LSE_STR = 0x2100; FP_STR = 0x2800; OC_STR = 0x2200; XT_STR = 0x2100
L_RED = 0; RED_STR = 2048
L_Q = 33024; Q_HS = 272; Q_BS = 2176
L_MX = 37376; L_LS = 38400
L_OB = 39424; L_OA = 72448; O_STR = 4128
LDS_BYTES = 105472
SCALE = (128 ** -0.5) * 1.4426950408889634
def f32(x): return "0x%08x" % struct.unpack("<I", struct.pack("<f", x))[0]

sKA, sVA, sKB, sVB, sWQ, sWO, sX, sWS, sOUT = [f"s[{44+4*i}:{47+4*i}]" for i in range(9)]
sW = "s3"
sP, sS, sBK, sCB = "s16", "s17", "s18", "s19"
sTAG = "s99"; sEP1 = "s100"; sC = "s101"
vLane, vG, vN = "v1", "v2", "v3"
vKA, vKB, vVA, vVB, vWQ, vWO, vX = "v4", "v5", "v6", "v7", "v8", "v9", "v10"
vSE, vSO, vSE0, vSO0, vSE1, vSO1 = "v11", "v12", "v13", "v14", "v15", "v244"
vT = "v245"; vB = "v248"; vXb = "v249"; vRW = "v250"; vRR = "v251"; vTS = "v255"
KR, VR, WR, SR, GR = 16, 96, 176, 208, 228
def vr(b, n=4): return f"v[{b}:{b+n-1}]"

DESC = '''; Single persistent launch, one 8-wave workgroup per CU (256 workgroups, all co-resident).
; that the whole group shares one L2; otherwise they are written through (sc1). Placement only changes speed.
'''
def gen(ts=False, opt=None):
    opt = opt or {}
    xcd = opt.get("xcd", 1)
    A = Asm(); I0 = A.I
    def I(text, tag=None):
        if opt.get("noq") and tag == "qst" and opt["noq"] & 1: return I0("s_nop 0")
        if opt.get("noq") and tag in ("G", "G2") and "x4" in text and opt["noq"] & 2: return I0("s_nop 0")
        if opt.get("gnt") and text.startswith("buffer_load") and text.endswith("sc1"):
            isq = tag in ("G", "G2")
            if (isq and opt["gnt"] & 1) or (not isq and opt["gnt"] & 2): text += " nt"
        return I0(text, tag)
    def S(*lines):
        for l in lines: I(l)
    nts = [0]
    def stamp(name=""):
        if not ts: return
        k = nts[0]; nts[0] += 1
        assert k < 32
        S("s_memrealtime s[4:5]", "s_waitcnt lgkmcnt(0)", f"v_writelane_b32 {vTS}, s4, {k}")
    def transpose(b):
        for (x, y) in ((1,4),(2,8),(3,12),(6,9),(7,13),(11,14)):
            I(f"v_swap_b32 v{b+x}, v{b+y}")
    def tag4(b):
        for i in range(4): I(f"v_perm_b32 v{b+i}, v{b+i}, {vT}, s{8+i}")
    def chk4(b, tmp, first):
        I(f"v_perm_b32 {tmp}, v{b+1}, v{b}, s12")
        I(f"v_perm_b32 {tmp}, v{b+2}, {tmp}, s13")
        I(f"v_perm_b32 {tmp}, v{b+3}, {tmp}, s14")
        if first: I(f"v_cmp_ne_u32 s[6:7], {tmp}, {vT}")
        else: S(f"v_cmp_ne_u32 vcc, {tmp}, {vT}", "s_or_b64 s[6:7], s[6:7], vcc")
    def untag4(b):
        for i in range(4): I(f"v_and_b32 v{b+i}, 0xffffff00, v{b+i}")
    def write_acc(vaddr, d):
        I(f"v_xor_b32 v243, 16, {vaddr}")
        I(f"ds_write2_b64 {vaddr}, {vr(d,2)}, {vr(d+4,2)} offset0:0 offset1:1")
        I(f"ds_write2_b64 {vaddr}, {vr(d+2,2)}, {vr(d+6,2)} offset0:64 offset1:65")
        I(f"ds_write2_b64 v243, {vr(d+8,2)}, {vr(d+12,2)} offset0:0 offset1:1")
        I(f"ds_write2_b64 v243, {vr(d+10,2)}, {vr(d+14,2)} offset0:64 offset1:65")
    def barrier():
        S("s_waitcnt lgkmcnt(0)", "s_barrier")
    def sum4(D):
        I(f"v_pk_add_f32 {vr(D,2)}, {vr(D,2)}, {vr(D+4,2)}")
        I(f"v_pk_add_f32 {vr(D+2,2)}, {vr(D+2,2)}, {vr(D+6,2)}")
        I(f"v_pk_add_f32 {vr(D+8,2)}, {vr(D+8,2)}, {vr(D+12,2)}")
        I(f"v_pk_add_f32 {vr(D+10,2)}, {vr(D+10,2)}, {vr(D+14,2)}")
        I(f"v_pk_add_f32 {vr(D,2)}, {vr(D,2)}, {vr(D+8,2)}")
        I(f"v_pk_add_f32 {vr(D+2,2)}, {vr(D+2,2)}, {vr(D+10,2)}")
    def dpp(op, r, ctl): I(f"{op}_dpp v{r}, v{r}, v{r} {ctl} row_mask:0xf bank_mask:0xf")
    def afrags(xb, af):
        for u, (se, so) in enumerate(((vSE0, vSO0), (vSE1, vSO1))):
            I(f"v_perm_b32 v{af+4*u+0}, v{xb}, v{xb}, {se}")
            I(f"v_perm_b32 v{af+4*u+1}, v{xb}, v{xb}, {so}")
            I(f"v_perm_b32 v{af+4*u+2}, v{xb+1}, v{xb+1}, {se}")
            I(f"v_perm_b32 v{af+4*u+3}, v{xb+1}, v{xb+1}, {so}")
    def projmm(Wb, af, D, u):
        for r in range(4):
            c = "0" if u == 0 else vr(D+4*r)
            I(f"v_mfma_f32_16x16x32_bf16 {vr(D+4*r)}, {vr(af+4*u)}, {vr(Wb+16*u+4*r)}, {c}")
    nlab = [0]
    def lstore(stores):
        n = nlab[0]; nlab[0] += 1
        S("s_cmp_lg_u32 s22, 0", f"s_cbranch_scc1 L_sl{n}")
        for pre, txt, tag in stores:
            S(*pre); I(txt + " sc1", tag)
        I(f"s_branch L_sd{n}")
        A.label(f"L_sl{n}")
        for pre, txt, tag in stores:
            S(*pre); I(txt, tag); A.vm.pop()
        A.label(f"L_sd{n}")
        I("s_mov_b64 exec, -1")
    def xrow(D):
        a0, a1, a2, a3 = [f"v{D+j}" for j in range(4)]
        S(f"v_permlane32_swap_b32 {a0}, {a2}", f"v_permlane32_swap_b32 {a1}, {a3}",
          f"v_add_f32 {a0}, {a0}, {a2}", f"v_add_f32 {a1}, {a1}, {a3}",
          f"v_permlane16_swap_b32 {a0}, {a1}", f"v_add_f32 {a0}, {a0}, {a1}",
          f"v_mov_b32 {a1}, {a0}", f"v_permlane16_swap_b32 {a0}, {a1}",
          f"v_mov_b32 {a2}, {a0}", f"v_mov_b32 {a3}, {a1}",
          f"v_permlane32_swap_b32 {a0}, {a2}", f"v_permlane32_swap_b32 {a1}, {a3}")
    def red_publish(D, vaddr, tag, local=False):
        for j in range(4): I(f"ds_read_b128 {vr(D+4*j)}, {vRR} offset:{L_RED+j*RED_STR}")
        I("s_waitcnt lgkmcnt(0)")
        sum4(D)
        xrow(D)
        tag4(D)
        if local:
            lstore([(["s_mov_b64 exec, 0xffff"], f"buffer_store_dwordx4 {vr(D)}, {vaddr}, {sWS}, 0 offen", tag)])
        else:
            S("s_mov_b64 exec, 0xffff")
            I(f"buffer_store_dwordx4 {vr(D)}, {vaddr}, {sWS}, 0 offen sc1", tag)
            I("s_mov_b64 exec, -1")

    A.raw(HEADER.rstrip())
    A.raw(DESC.rstrip())
    A.raw(f"; @launch grid=(256,1,1) block=(512,1,1) lds={LDS_BYTES}")
    A.raw('.amdgcn_target "amdgcn-amd-amdhsa--gfx950"\n.text')
    A.raw(f".globl {NAME}_kernel\n.p2align 8\n.type {NAME}_kernel,@function\n{NAME}_kernel:")
    S("s_cmp_ge_u32 s2, 256", "s_cbranch_scc1 L_end")
    S("s_load_dwordx16 s[16:31], s[0:1], 0", "s_load_dwordx8 s[32:39], s[0:1], 64", "s_load_dwordx2 s[40:41], s[0:1], 96")
    if ts: I(f"v_mov_b32 {vTS}, 0")
    stamp("start")
    S("v_lshrrev_b32 v246, 6, v0", f"v_and_b32 {vLane}, 63, v0", f"v_readfirstlane_b32 {sW}, v246",
      f"v_lshrrev_b32 {vG}, 4, {vLane}", f"v_and_b32 {vN}, 15, {vLane}", f"v_lshlrev_b32 v247, 4, {vN}")
    ks2 = opt.get("ks2", 1)
    if opt.get("qperm", 0):
        S("s_and_b32 s43, s2, 0x81", "s_bfe_u32 s10, s2, 0x40003", "s_lshl_b32 s10, s10, 1", "s_or_b32 s43, s43, s10",
          "s_bfe_u32 s10, s2, 0x20001", "s_lshl_b32 s10, s10, 5", "s_or_b32 s43, s43, s10")
    elif opt.get("qev", 1):
        S("s_and_b32 s43, s2, 0xfc", "s_bfe_u32 s10, s2, 0x10001", "s_or_b32 s43, s43, s10", "s_and_b32 s10, s2, 1", "s_lshl_b32 s10, s10, 1",
          "s_or_b32 s43, s43, s10", f"s_xor_b32 s43, s43, {opt.get('qx', 6)}")
    else: I(f"s_xor_b32 s43, s2, {opt.get('qx', 0)}")
    if ks2:
        rot = opt.get("rot", 0)
        if rot: S(f"s_lshr_b32 s11, s43, {rot}", f"s_add_u32 s11, s11, {sW}", "s_and_b32 s11, s11, 7", "s_lshl_b32 s11, s11, 6")
        else: I(f"s_lshl_b32 s11, {sW}, 6")
        S("s_and_b32 s10, s43, 1", "s_lshl_b32 s10, s10, 9", "s_add_u32 s10, s10, s11", f"s_lshl_b32 s11, {sW}, 5",
          "s_lshl_b32 s12, s10, 13", "s_bfe_u32 s13, s43, 0x60001", "s_lshl_b32 s13, s13, 7", "s_add_u32 s12, s12, s13")
        S(f"v_lshrrev_b32 v246, 3, {vN}", "v_lshlrev_b32 v246, 17, v246", f"v_lshl_add_u32 v246, {vG}, 15, v246", f"v_and_b32 v248, 7, {vN}",
          "v_lshl_add_u32 v246, v248, 4, v246", f"v_add_u32 {vWQ}, s12, v246")
    else:
        S("s_and_b32 s10, s2, 3", "s_lshl_b32 s10, s10, 8", f"s_lshl_b32 s11, {sW}, 5", "s_add_u32 s10, s10, s11",
          "s_lshl_b32 s12, s10, 13", "s_lshr_b32 s13, s2, 2", "s_and_b32 s13, s13, 31", "s_lshl_b32 s13, s13, 8", "s_add_u32 s12, s12, s13")
        S(f"v_lshl_add_u32 v246, {vG}, 15, v247", f"v_add_u32 {vWQ}, s12, v246")
    S(f"v_bfe_u32 {vB}, {vLane}, 1, 2", f"v_bfe_u32 {vXb}, {vLane}, 3, 1", f"v_lshlrev_b32 v246, 11, {vB}",
      f"v_lshl_add_u32 v246, {vXb}, 5, v246", f"v_lshl_add_u32 v246, {vG}, 3, v246", "s_lshl_b32 s10, s10, 1", f"v_add_u32 {vX}, s10, v246")
    for u in range(2):
        for t in range(4): I(f"s_mov_b32 s{80+4*u+t}, {t*8192+u*(262144 if ks2 else 131072)}")
    S("s_mov_b32 s62, 8388608", "s_mov_b32 s63, 0x00020000", "s_mov_b32 s70, 8192", "s_mov_b32 s71, 0x00020000")
    if xcd: S("s_and_b32 s4, s2, 7", "s_lshl_b32 s4, s4, 1", "s_bfe_u32 s5, s2, 0x10003", "s_add_u32 s4, s4, s5", "s_lshr_b32 s5, s2, 4")
    else: S("s_lshr_b32 s4, s2, 4", "s_and_b32 s5, s2, 15")
    S("s_lshr_b32 s14, s4, 3", "s_lshl_b32 s14, s14, 4", "s_add_u32 s14, s14, s5", "s_and_b32 s15, s4, 7")
    S("s_cmp_ge_u32 s43, 128", "s_waitcnt lgkmcnt(0)")
    S("s_cselect_b32 s60, s32, s22", "s_cselect_b32 s61, s33, s23", "s_cselect_b32 s68, s26, s16", "s_cselect_b32 s69, s27, s17")
    I(f"buffer_load_dwordx2 v[232:233], {vX}, {sX}, 0 offen", "x")
    if ks2: I(f"buffer_load_dwordx2 v[234:235], {vX}, {sX}, 0 offen offset:64", "x")
    for u in range(2):
        for t in range(4):
            I(f"buffer_load_dwordx4 {vr(WR+16*u+4*t)}, {vWQ}, {sWQ}, s{80+4*u+t} offen nt", f"wq{u}")
    I("s_load_dword s42, s[40:41], 0")
    krot = opt.get("krot", 3)
    if krot & 4: S("s_lshr_b32 s13, s2, 3", "s_add_u32 s13, s13, s2", "s_lshr_b32 s8, s2, 6", "s_add_u32 s13, s13, s8", f"s_add_u32 s13, s13, {sW}", "s_and_b32 s13, s13, 7")
    elif krot & 1: S("s_lshr_b32 s13, s2, 3", f"s_add_u32 s13, s13, {sW}", "s_and_b32 s13, s13, 7")
    else: I(f"s_mov_b32 s13, {sW}")
    S("s_lshl_b32 s6, s4, 21", "s_lshl_b32 s7, s5, 17", "s_add_u32 s7, s7, s6", "s_lshl_b32 s8, s13, 14", "s_add_u32 s7, s7, s8",
      "s_lshl_b32 s9, s5, 15", "s_add_u32 s9, s9, s6", "s_lshl_b32 s8, s13, 12", "s_add_u32 s9, s9, s8", f"s_add_u32 s9, s9, {6144*256}")
    klds = opt.get("klds", 1)
    if klds: S(f"v_lshlrev_b32 v246, 4, {vLane}")
    else: S(f"v_lshlrev_b32 v246, 8, {vN}", f"v_lshl_add_u32 v246, {vG}, 4, v246")
    S(f"v_add_u32 {vKA}, s7, v246", f"v_add_u32 {vKB}, s9, v246",
      f"v_lshl_add_u32 v246, {vG}, 10, v247", f"v_add_u32 {vVA}, s7, v246", f"v_add_u32 {vVB}, s9, v246")
    for (d, s) in ((52,28),(44,18),(48,20),(56,30)):
        S(f"s_mov_b32 s{d}, s{s}", f"s_mov_b32 s{d+1}, s{s+1}", f"s_mov_b32 s{d+2}, 33554432", f"s_mov_b32 s{d+3}, 0x00020000")
    TS_ = ["s21", "s96", "s97", "s98"] if False else ["s28", "s29", "s30", "s31"]
    for j in range(1, 4): I(f"s_mov_b32 s{95+j}, {4096*j}")
    if krot & 2: S("s_lshr_b32 s13, s2, 4", f"s_add_u32 s13, s13, s2", f"s_add_u32 s13, s13, {sW}")
    else: I("s_mov_b32 s13, 0")
    for j in range(4): S(f"s_add_u32 {TS_[j]}, s13, {j}", f"s_and_b32 {TS_[j]}, {TS_[j]}, 3", f"s_lshl_b32 {TS_[j]}, {TS_[j]}, 12")
    if opt.get("b1", 1): I("s_barrier")
    kdone = set()
    def loadKn(n):
        for j in range(5):
            for st in range(4):
                if n > 0 and (j, st) not in kdone:
                    loadK(j, (st,)); n -= 1
    def loadK(j, sts=(0, 1, 2, 3)):
        for st in sts:
            if (j, st) in kdone: continue
            kdone.add((j, st))
            ko = (1024 if klds else 64) * st
            if j == 0: I(f"buffer_load_dwordx4 {vr(KR+4*st)}, {vKB}, {sKB}, 0 offen offset:{ko} nt", "K0")
            else:
                so = TS_[j-1]
                I(f"buffer_load_dwordx4 {vr(KR+16*j+4*st)}, {vKA}, {sKA}, {so} offen offset:{ko} nt", f"K{j}")
    def loadV(j):
        for t in range(4):
            if j == 0: I(f"buffer_load_dwordx4 {vr(VR+4*t)}, {vVB}, {sVB}, 0 offen offset:{256*t} nt", "V0")
            else:
                so = TS_[j-1]
                I(f"buffer_load_dwordx4 {vr(VR+16*j+4*t)}, {vVA}, {sVA}, {so} offen offset:{256*t} nt", f"V{j}")
    WO = 48
    wodone = [0]
    def loadWOn(n):
        k = 0
        while wodone[0] < n:
            u, t = divmod(wodone[0], 4); wodone[0] += 1; k += 1
            I(f"buffer_load_dwordx4 {vr(WO+16*u+4*t)}, {vWO}, {sWO}, s{88+4*u+t} offen nt", f"wo{u}")
        return k
    def loadWO(u): loadWOn(4*(u+1))
    npre = opt.get("npre", 1)
    loadKn(opt.get("kq1", 3))
    S("s_cmp_ge_u32 s14, 16", "s_cselect_b32 s64, s34, s24", "s_cselect_b32 s65, s35, s25", "s_mov_b32 s66, 8388608", "s_mov_b32 s67, 0x00020000")
    if opt.get("worot", 0): S(f"s_add_u32 s33, s2, {sW}", "s_lshr_b32 s32, s2, 3", "s_add_u32 s33, s33, s32", "s_and_b32 s33, s33, 7")
    else: I(f"s_mov_b32 s33, {sW}")
    I("s_lshl_b32 s11, s33, 5")
    S("s_and_b32 s6, s14, 15", "s_lshl_b32 s6, s6, 8", "s_add_u32 s6, s6, s11", "s_lshl_b32 s6, s6, 11", "s_lshl_b32 s7, s15, 8", "s_add_u32 s6, s6, s7")
    S(f"v_lshl_add_u32 v246, {vG}, 13, v247", f"v_add_u32 {vWO}, s6, v246")
    for u in range(2):
        for t in range(4): I(f"s_mov_b32 s{88+4*u+t}, {t*2048+u*32768}")
    S("s_mov_b32 s72, s40", "s_mov_b32 s73, s41", "s_mov_b32 s74, 268435456", "s_mov_b32 s75, 0x00020000")
    S("s_mov_b32 s76, s36", "s_mov_b32 s77, s37", "s_mov_b32 s78, 16384", "s_mov_b32 s79, 0x00020000")
    S(f"s_mov_b32 {sP}, s4", f"s_mov_b32 {sS}, s5", f"s_mov_b32 {sBK}, s14", f"s_mov_b32 {sCB}, s15")
    S(f"v_and_b32 v246, 1, {vLane}", "v_cmp_eq_u32 vcc, 0, v246", "v_mov_b32 v246, 0x01000c0c", "v_mov_b32 v247, 0x0c0c0100",
      f"v_cndmask_b32 {vSE}, v246, v247, vcc", "v_mov_b32 v246, 0x03020c0c", "v_mov_b32 v247, 0x0c0c0302", f"v_cndmask_b32 {vSO}, v246, v247, vcc",
      f"v_cmp_eq_u32 vcc, 0, {vXb}", "v_mov_b32 v246, 0x0c0c0c0c",
      f"v_cndmask_b32 {vSE0}, v246, {vSE}, vcc", f"v_cndmask_b32 {vSO0}, v246, {vSO}, vcc",
      f"v_cndmask_b32 {vSE1}, {vSE}, v246, vcc", f"v_cndmask_b32 {vSO1}, {vSO}, v246, vcc")
    for i in range(4): I(f"s_mov_b32 s{8+i}, {0x07060500+i:#x}")
    S("s_mov_b32 s12, 0x0c0c0400", "s_mov_b32 s13, 0x0c040100", "s_mov_b32 s14, 0x04020100", f"s_mov_b32 {sC}, {f32(SCALE)}")
    S(f"v_lshrrev_b32 v246, 1, {vG}", f"v_lshl_add_u32 v246, {sW}, 1, v246", f"v_mul_u32_u24 v246, {RED_STR}, v246",
      f"v_and_b32 v247, 1, {vG}", "v_lshl_add_u32 v246, v247, 10, v246", f"v_lshl_add_u32 {vRW}, {vN}, 5, v246",
      f"v_bfe_u32 v247, {vN}, 2, 1", f"v_lshl_add_u32 {vRW}, v247, 4, {vRW}",
      f"v_lshrrev_b32 v247, 3, {vN}", f"v_xor_b32 v247, v247, {vN}",
      f"v_mul_u32_u24 v246, {4*RED_STR}, {vG}", f"v_lshl_add_u32 v247, {sW}, 4, v247", f"v_lshl_add_u32 {vRR}, v247, 4, v246")
    if ks2:
        S("s_lshr_b32 s4, s43, 2", "s_and_b32 s4, s4, 31", "s_lshl_b32 s4, s4, 2", f"s_lshr_b32 s5, {sW}, 1", "s_add_u32 s4, s4, s5", f"s_mul_i32 s4, s4, {QP_STR}",
          "s_lshr_b32 s5, s43, 7", "s_lshl_b32 s5, s5, 10", "s_add_u32 s4, s4, s5", "s_and_b32 s5, s43, 1", "s_lshl_b32 s5, s5, 9", "s_add_u32 s4, s4, s5",
          "s_and_b32 s5, s43, 2", "s_lshl_b32 s5, s5, 7", "s_add_u32 s4, s4, s5",
          f"s_and_b32 s5, {sW}, 1", "s_lshl_b32 s6, s5, 7", "s_add_u32 s4, s4, s6", f"s_add_u32 s4, s4, {WS_QP}",
          f"v_and_b32 v247, 7, {vLane}", "v_lshlrev_b32 v246, 4, v247", "v_add_u32 v252, s4, v246")
        S(f"v_lshrrev_b32 v246, 1, {vG}", f"v_lshl_add_u32 v246, {sW}, 1, v246", "v_mul_u32_u24 v246, 1088, v246", f"v_and_b32 v240, 1, {vG}",
          "v_lshl_add_u32 v246, v240, 9, v246", "v_lshl_add_u32 v246, v247, 5, v246", "v_lshrrev_b32 v240, 2, v247", "v_lshl_add_u32 v240, v240, 4, v246",
          f"v_lshrrev_b32 v246, 3, {vLane}", "v_mul_u32_u24 v246, 2176, v246", "v_xor_b32 v241, s5, v247", f"v_lshl_add_u32 v241, {sW}, 3, v241",
          "v_lshl_add_u32 v241, v241, 4, v246")
    else:
        S("s_lshr_b32 s4, s2, 2", "s_and_b32 s4, s4, 31", "s_lshl_b32 s4, s4, 2", f"s_lshr_b32 s5, {sW}, 1", "s_add_u32 s4, s4, s5", f"s_mul_i32 s4, s4, {QP_STR}",
          "s_lshr_b32 s5, s2, 7", "s_lshl_b32 s5, s5, 2", "s_and_b32 s6, s2, 3", "s_add_u32 s5, s5, s6", "s_lshl_b32 s5, s5, 9", "s_add_u32 s4, s4, s5",
          f"s_and_b32 s5, {sW}, 1", "s_lshl_b32 s5, s5, 8", "s_add_u32 s4, s4, s5", f"s_add_u32 s4, s4, {WS_QP}",
          f"v_lshlrev_b32 v246, 4, {vN}", "v_add_u32 v252, s4, v246")
    S(f"s_and_b32 s5, {sP}, 3", "s_lshl_b32 s5, s5, 3", f"s_add_u32 s5, s5, {sW}", "s_lshl_b32 s5, s5, 2",
      f"s_lshr_b32 s4, {sP}, 2", "s_add_u32 s5, s5, s4", f"s_mul_i32 s5, s5, {QP_STR}", f"s_add_u32 s5, s5, {WS_QP}")
    S(f"v_lshlrev_b32 v246, 4, {vLane}", "v_add_u32 v253, s5, v246")
    S("s_waitcnt lgkmcnt(0)", f"s_add_u32 {sEP1}, s42, 1", f"s_mul_i32 {sTAG}, {sEP1}, 0x9e3779b1",
      f"s_lshr_b32 s4, {sTAG}, 15", f"s_xor_b32 {sTAG}, {sTAG}, s4", f"s_mul_i32 {sTAG}, {sTAG}, 0x85ebca6b",
      f"s_lshr_b32 s4, {sTAG}, 13", f"s_xor_b32 {sTAG}, {sTAG}, s4", f"v_mov_b32 {vT}, {sTAG}")
    S("s_getreg_b32 s25, hwreg(HW_REG_XCC_ID)", f"s_mul_i32 s26, {sP}, {XT_STR}", f"s_add_u32 s26, s26, {WS_XT}")
    S(f"s_cmp_lg_u32 {sW}, 0", "s_cbranch_scc1 L_noxt")
    S(f"s_lshl_b32 s4, {sS}, 3", "s_add_u32 s4, s4, s26", "v_mov_b32 v246, s4", f"v_mov_b32 v{SR}, s25", f"v_mov_b32 v{SR+1}, {sTAG}", "s_mov_b64 exec, 1")
    I0(f"buffer_store_dwordx2 {vr(SR,2)}, v246, {sWS}, 0 offen sc1"); A.vm.pop()
    I("s_mov_b64 exec, -1")
    A.label("L_noxt")

    A.wait_vm("x")
    if ks2:
        for u in range(2):
            S(f"v_perm_b32 v{224+4*u}, v{232+2*u}, v{232+2*u}, {vSE}", f"v_perm_b32 v{225+4*u}, v{232+2*u}, v{232+2*u}, {vSO}",
              f"v_perm_b32 v{226+4*u}, v{233+2*u}, v{233+2*u}, {vSE}", f"v_perm_b32 v{227+4*u}, v{233+2*u}, v{233+2*u}, {vSO}")
    else: afrags(232, 224)
    for u in range(2):
        A.wait_vm(f"wq{u}"); transpose(WR+16*u); projmm(WR, 224, SR, u)
    stamp("wq arrived")
    npre2 = npre
    if ks2:
        d = SR
        S("v_xor_b32 v243, 16, v240", "s_mov_b32 exec_lo, 0x00ff00ff", "s_mov_b32 exec_hi, 0xff00ff00")
        I(f"ds_write2_b64 v240, {vr(d,2)}, {vr(d+4,2)} offset0:0 offset1:1")
        I(f"ds_write2_b64 v240, {vr(d+2,2)}, {vr(d+6,2)} offset0:32 offset1:33")
        I(f"ds_write2_b64 v243, {vr(d+8,2)}, {vr(d+12,2)} offset0:0 offset1:1")
        I(f"ds_write2_b64 v243, {vr(d+10,2)}, {vr(d+14,2)} offset0:32 offset1:33")
        I("s_mov_b64 exec, -1")
        loadKn(opt.get("kq2", 3))
        barrier()
        S(f"ds_read_b128 {vr(d)}, v241", f"ds_read_b128 {vr(d+4)}, v241 offset:1088", "s_waitcnt lgkmcnt(0)",
          f"v_pk_add_f32 {vr(d,2)}, {vr(d,2)}, {vr(d+4,2)}", f"v_pk_add_f32 {vr(d+2,2)}, {vr(d+2,2)}, {vr(d+6,2)}")
        for j in range(4): dpp("v_add_f32", d+j, "row_ror:8")
        xrow(d)
        tag4(d)
        I("s_mov_b64 exec, 0xff")
        I(f"buffer_store_dwordx4 {vr(d)}, v252, {sWS}, 0 offen sc1", "qst")
        I("s_mov_b64 exec, -1")
    else:
        write_acc(vRW, SR)
        barrier()
        red_publish(SR, "v252", "qst")
    I("s_barrier")
    stamp("q published")
    for j in range(5): loadK(j)
    def gatherQ(tag):
        for i in range(2 if ks2 else 4): I(f"buffer_load_dwordx4 {vr(GR+(8 if ks2 else 4)*i)}, v253, {sWS}, 0 offen offset:{1024*i} sc1", tag)
    S(f"v_lshlrev_b32 v242, 3, {vN}", "v_add_u32 v242, s26, v242")
    def issueG():
        I0(f"buffer_load_dwordx2 {vr(SR,2)}, v242, {sWS}, 0 offen sc1", "G")
        gatherQ("G")
    gpos = opt.get("gpos", 0)
    if gpos == 0: issueG()
    S(f"s_lshl_b32 s4, {sW}, 13", f"s_add_u32 s4, s4, {L_OB}")
    for st in range(4):
        S(f"v_add_u32 v246, {4*st}, {vG}", f"v_xor_b32 v247, v246, {vN}", "v_lshlrev_b32 v247, 4, v247")
        I(f"v_lshl_add_u32 v{SR+4+st}, v246, 8, v247")
        I(f"v_lshl_add_u32 v{SR+8+st}, {vN}, 8, v247")
        I(f"v_add_u32 v{SR+4+st}, s4, v{SR+4+st}"); I(f"v_add_u32 v{SR+8+st}, s4, v{SR+8+st}")
    def ktrans():
        for j in range(5):
            A.wait_vm(f"K{j}")
            for st in range(4): I(f"ds_write_b128 v{SR+4+st}, {vr(KR+16*j+4*st)} offset:{4096*(j&1)}")
            for st in range(4): I(f"ds_read_b128 {vr(KR+16*j+4*st)}, v{SR+8+st} offset:{4096*(j&1)}")
    tearly = opt.get("tearly", 1)
    if tearly:
        S(f"s_cmp_ge_u32 {sW}, 4", "s_cbranch_scc1 L_tskip")
        ktrans()
        A.label("L_tskip")
    I("s_barrier")
    if gpos == 1: issueG()
    nv1 = opt.get("nv1", 1)
    for j in range(nv1): loadV(j)
    if gpos == 2: issueG()
    S(f"v_lshrrev_b32 v246, 5, {vLane}", f"v_mul_u32_u24 v246, {Q_BS}, v246", f"v_and_b32 v247, 31, {vLane}", "v_lshl_add_u32 v246, v247, 3, v246",
      f"s_mul_i32 s4, {sW}, {Q_HS}", "v_add_u32 v252, s4, v246")
    S(f"v_lshrrev_b32 v247, 1, {vN}", f"v_mul_u32_u24 v247, {Q_HS}, v247", f"v_lshl_add_u32 v254, {vG}, 4, v247")
    if tearly:
        S(f"s_cmp_lt_u32 {sW}, 4", "s_cbranch_scc1 L_tdone")
        ktrans()
        A.label("L_tdone")
    else: ktrans()
    I("s_mov_b32 s15, 0")
    A.wait_vm("G")
    stamp("G arrived")
    S(f"v_cmp_ne_u32 s[6:7], s25, v{SR}", f"v_cmp_ne_u32 vcc, {vT}, v{SR+1}", "s_or_b64 s[6:7], s[6:7], vcc", "s_cmp_eq_u64 s[6:7], 0", "s_cselect_b32 s22, 1, 0")
    if opt.get("noloc"): I("s_mov_b32 s22, 0")
    A.label("L_qchk")
    for i in range(2 if ks2 else 4): chk4(GR+(8 if ks2 else 4)*i, "v246", i == 0)
    if opt.get("noq"): I("s_mov_b64 s[6:7], 0")
    S("s_cmp_eq_u64 s[6:7], 0", "s_cbranch_scc1 L_qok", "s_add_u32 s15, s15, 1", "s_cmp_gt_u32 s15, 1000000", "s_cbranch_scc1 L_qok")
    nvm = len(A.vm)
    gatherQ("G2")
    S("s_waitcnt vmcnt(0)", "s_branch L_qchk")
    del A.vm[nvm:]
    A.label("L_qok")
    stamp("G ok")
    if ts: S("s_lshl_b32 s4, s15, 1", "s_add_u32 s4, s4, s22", "s_add_u32 s4, s4, 1", f"v_writelane_b32 {vTS}, s4, 30")
    for i in range(2 if ks2 else 4): untag4(GR+(8 if ks2 else 4)*i)
    for j in range(0, 0 if ks2 else 4, 2):
        I(f"v_pk_add_f32 {vr(GR+j,2)}, {vr(GR+j,2)}, {vr(GR+4+j,2)}")
        I(f"v_pk_add_f32 {vr(GR+8+j,2)}, {vr(GR+8+j,2)}, {vr(GR+12+j,2)}")
    for j in range(4): I(f"v_permlane32_swap_b32 v{GR+j}, v{GR+8+j}")
    for j in range(0, 4, 2): I(f"v_pk_add_f32 {vr(GR+j,2)}, {vr(GR+j,2)}, {vr(GR+8+j,2)}")
    S(f"v_cvt_pk_bf16_f32 v{GR}, v{GR}, v{GR+1}", f"v_cvt_pk_bf16_f32 v{GR+1}, v{GR+2}, v{GR+3}")
    I(f"ds_write_b64 v252, {vr(GR,2)} offset:{L_Q}")
    barrier()
    QA, QB = WR, WR+16
    for st in range(4): I(f"ds_read_b128 {vr(QB+4*st)}, v254 offset:{L_Q+Q_BS+64*st}")
    for st in range(4): I(f"ds_read_b128 {vr(QA+4*st)}, v254 offset:{L_Q+64*st}")
    S(f"v_lshrrev_b32 v246, 5, {vLane}", f"v_lshl_add_u32 v246, v246, 4, {vN}", "v_lshlrev_b32 v246, 5, v246",
      f"v_lshl_add_u32 v253, {sW}, 2, v246", f"v_lshlrev_b32 v252, 5, {vN}")
    I("s_waitcnt lgkmcnt(0)")
    for st in range(4):
        for j in range(5):
            q = QB if j == 0 else QA
            c = "0" if st == 0 else vr(SR+4*j)
            I(f"v_mfma_f32_16x16x32_bf16 {vr(SR+4*j)}, {vr(KR+16*j+4*st)}, {vr(q+4*st)}, {c}")
    nvq = opt.get("nvq", 2)
    for u in range(opt.get("woearly", 0)): loadWO(u)
    for j in range(nv1, nvq): loadV(j)
    stamp("QK done")
    TM = 80
    mA, mB = f"v{TM}", f"v{TM+1}"
    S(f"v_max3_f32 {mB}, v{SR}, v{SR+1}, v{SR+2}", f"v_max_f32 {mB}, {mB}, v{SR+3}", f"v_max3_f32 {mA}, v{SR+4}, v{SR+5}, v{SR+6}")
    for k in range(SR+7, SR+19, 2): I(f"v_max3_f32 {mA}, {mA}, v{k}, v{k+1}")
    I(f"v_max_f32 {mA}, {mA}, v{SR+19}")
    def xreduce(a, b, op, t):
        S(f"v_permlane32_swap_b32 {a}, {b}", f"{op} {a}, {a}, {b}", f"v_mov_b32 {t}, {a}", f"v_permlane16_swap_b32 {a}, {t}", f"{op} {a}, {a}, {t}")
    xreduce(mA, mB, "v_max_f32", f"v{TM+2}")
    I(f"ds_write_b32 v253, {mA} offset:{L_MX}")
    barrier()
    R = WR
    for k in range(4): I(f"ds_read_b128 {vr(R+4*k)}, v252 offset:{L_MX+(k>>1)*512+(k&1)*16}")
    I("s_waitcnt lgkmcnt(0)")
    for (m, b) in ((mA, R), (mB, R+8)):
        S(f"v_max3_f32 {m}, v{b}, v{b+1}, v{b+2}", f"v_max3_f32 {m}, {m}, v{b+3}, v{b+4}", f"v_max3_f32 {m}, {m}, v{b+5}, v{b+6}", f"v_max_f32 {m}, {m}, v{b+7}")
    S(f"v_mul_f32 {mA}, {sC}, {mA}", f"v_mul_f32 {mB}, {sC}, {mB}")
    for k in range(20):
        I(f"v_fma_f32 v{SR+k}, v{SR+k}, {sC}, -{mB if k < 4 else mA}")
    for k in range(20): I(f"v_exp_f32 v{SR+k}, v{SR+k}")
    lA, lB = f"v{TM+4}", f"v{TM+5}"
    S(f"v_add_f32 {lB}, v{SR}, v{SR+1}", f"v_add_f32 {lB}, {lB}, v{SR+2}", f"v_add_f32 {lB}, {lB}, v{SR+3}", f"v_add_f32 {lA}, v{SR+4}, v{SR+5}")
    for k in range(6, 20): I(f"v_add_f32 {lA}, {lA}, v{SR+k}")
    xreduce(lA, lB, "v_add_f32", f"v{TM+2}")
    I(f"ds_write_b32 v253, {lA} offset:{L_LS}")
    S(f"s_lshl_b32 s4, {sW}, 1", f"v_readlane_b32 s42, {mA}, s4", f"v_readlane_b32 s43, {mB}, s4")
    for j in range(5):
        b = SR+4*j
        S(f"v_cvt_pk_bf16_f32 v{TM+6}, v{b}, v{b+1}", f"v_cvt_pk_bf16_f32 v{TM+7}, v{b+2}, v{b+3}",
          f"v_perm_b32 v{b}, v{TM+6}, v{TM+6}, {vSE}", f"v_perm_b32 v{b+1}, v{TM+6}, v{TM+6}, {vSO}",
          f"v_perm_b32 v{b+2}, v{TM+7}, v{TM+7}, {vSE}", f"v_perm_b32 v{b+3}, v{TM+7}, v{TM+7}, {vSO}")
    stamp("softmax done")
    nv2 = opt.get("nv2", 4)
    for j in range(nvq, nv2): loadV(j)
    OA, OB = 16, 32
    def pv(j, O, first):
        A.wait_vm(f"V{j}")
        transpose(VR+16*j)
        for r in range(4):
            c = "0" if first else vr(O+4*r)
            I(f"v_mfma_f32_16x16x32_bf16 {vr(O+4*r)}, {vr(SR+4*j)}, {vr(VR+16*j+4*r)}, {c}")
    vOW, vOR, vOS, vLSs, vLSr = [f"v{TM+8+i}" for i in range(5)]
    S(f"s_mul_i32 s4, {sW}, {O_STR}", f"v_lshlrev_b32 v246, 10, {vG}", f"v_lshl_add_u32 v246, {vN}, 5, v246", f"v_bfe_u32 v247, {vN}, 2, 1", "v_lshl_add_u32 v246, v247, 4, v246", f"v_add_u32 {vOW}, s4, v246",
      f"v_lshrrev_b32 v246, 3, {vN}", f"v_and_b32 v247, 31, {vLane}", "v_xor_b32 v247, v247, v246",
      f"v_lshrrev_b32 v246, 5, {vLane}", f"v_mul_u32_u24 v246, {4*O_STR}, v246", f"v_lshl_add_u32 v247, {sW}, 5, v247", f"v_lshl_add_u32 {vOR}, v247, 4, v246")
    S(f"s_lshl_b32 s5, {sP}, 17", f"s_lshl_b32 s6, {sW}, 13", "s_add_u32 s5, s5, s6", f"s_lshl_b32 s7, {sS}, 8", "s_add_u32 s5, s5, s7", f"s_add_u32 s5, s5, {WS_OP}")
    S(f"v_and_b32 v246, 1, {vG}", "v_lshlrev_b32 v246, 12, v246", f"v_lshl_add_u32 v246, {vN}, 4, v246", f"v_add_u32 {vOS}, s5, v246")
    S(f"s_lshl_b32 s5, {sP}, 4", f"s_add_u32 s5, s5, {sW}", f"s_mul_i32 s5, s5, {LSE_STR}", f"s_lshl_b32 s7, {sS}, 3", "s_add_u32 s5, s5, s7",
      f"s_add_u32 s5, s5, {WS_LSE}", f"v_mov_b32 {vLSs}, s5", f"s_lshl_b32 s4, {sW}, 6", f"v_mov_b32 {vLSr}, s4",
      "s_mov_b32 s20, 65536", f"s_mov_b32 s21, {8*LSE_STR}")
    own = opt.get("own", 1)
    vRA = f"v{TM+13}"
    def lsum(b, rc, lg, sm):
        I(f"v_pk_add_f32 {vr(b,2)}, {vr(b,2)}, {vr(b+2,2)}")
        I(f"v_pk_add_f32 {vr(b+4,2)}, {vr(b+4,2)}, {vr(b+6,2)}")
        I(f"v_pk_add_f32 {vr(b,2)}, {vr(b,2)}, {vr(b+4,2)}")
        I(f"v_add_f32 v{b}, v{b}, v{b+1}")
        S(f"v_rcp_f32 {rc}, v{b}", f"v_log_f32 v{lg}, v{b}")
        S(f"v_mov_b32 v{lg+1}, {vT}", f"v_add_f32 v{lg}, {sm}, v{lg}")
    def publishO(br, O, Lb):
        I(f"v_add_u32 v246, {Lb}, {vOW}")
        write_acc("v246", O)
        I(f"v_add_u32 v247, {Lb}, {vOR}")
        barrier()
        for j in range(4): I(f"ds_read_b128 {vr(R+4*j)}, v247 offset:{j*O_STR}")
        if br == 1 or not own:
            for k in range(2): I(f"ds_read_b128 {vr(R+16+4*k)}, {vLSr} offset:{L_LS+br*512+16*k}")
        if br == 1 and own:
            for k in range(2): I(f"ds_read_b128 {vr(R+24+4*k)}, {vLSr} offset:{L_LS+16*k}")
        I("s_waitcnt lgkmcnt(0)")
        rc = f"v{R+18}"
        if br == 1 or not own: lsum(R+16, rc, R+20, f"s{42+br}")
        else: rc = vRA
        if br == 1 and own: lsum(R+24, vRA, R+28, "s42")
        sum4(R)
        S(f"v_permlane32_swap_b32 v{R}, v{R+1}", f"v_permlane32_swap_b32 v{R+2}, v{R+3}",
          f"v_add_f32 v{R}, v{R}, v{R+1}", f"v_add_f32 v{R+2}, v{R+2}, v{R+3}",
          f"v_mul_f32 v{R}, v{R}, {rc}", f"v_mul_f32 v{R+2}, v{R+2}, {rc}",
          f"v_mov_b32 v{R+1}, v{R}", f"v_mov_b32 v{R+3}, v{R+2}",
          f"v_permlane32_swap_b32 v{R}, v{R+1}", f"v_permlane32_swap_b32 v{R+2}, v{R+3}")
        tag4(R)
        st = [(["s_mov_b32 exec_lo, -1", "s_mov_b32 exec_hi, 0"], f"buffer_store_dwordx4 {vr(R)}, {vOS}, {sWS}, {'0' if br == 0 else 's20'} offen", f"ost{br}")]
        if br == 1 or not own:
            st.append((["s_mov_b64 exec, 1"], f"buffer_store_dwordx2 {vr(R+20,2)}, {vLSs}, {sWS}, {'0' if br == 0 else 's21'} offen", f"ost{br}"))
        if br == 1 and own:
            st.append(([], f"buffer_store_dwordx2 {vr(R+28,2)}, {vLSs}, {sWS}, 0 offen", f"ost{br}"))
        lstore(st)
        if br == 0 and own:
            S(f"s_lshr_b32 s4, {sS}, 1", f"s_cmp_lg_u32 s4, {sW}", "s_cbranch_scc1 L_nown",
              f"s_and_b32 s4, {sS}, 1", "s_lshl_b32 s4, s4, 4", "s_lshl_b32 exec_lo, 0xffff, s4", "s_mov_b32 exec_hi, 0")
            I(f"ds_write_b128 v232, {vr(R)} offset:{L_MX}")
            S("s_mov_b64 exec, -1", "s_waitcnt lgkmcnt(0)")
            A.label("L_nown")
    pv(0, OB, True)
    publishO(1, OB, L_OB)
    if nv2 < 5: I("s_barrier")
    stamp("B published")
    for j in range(nv2, 5): loadV(j)
    wosplit = opt.get("woearly", 0)
    wolate = 0
    vCS, vOCg = vVB, vWQ
    S(f"s_lshl_b32 s4, {sP}, 1", f"s_and_b32 s5, {sW}, 1", "s_add_u32 s4, s4, s5",
      "s_lshl_b32 s6, s4, 4", f"s_add_u32 s6, s6, {sS}", "s_lshl_b32 s6, s6, 12", f"s_add_u32 s6, s6, {WS_OP}",
      f"v_lshlrev_b32 v246, 4, {vLane}", "v_add_u32 v252, s6, v246",
      "s_lshl_b32 s6, s4, 3", f"s_lshr_b32 s7, {sS}, 1", "s_add_u32 s6, s6, s7", f"s_mul_i32 s6, s6, {LSE_STR}", f"s_add_u32 s6, s6, {WS_LSE}",
      f"v_lshlrev_b32 v246, 3, {vN}", "v_add_u32 v253, s6, v246")
    S("s_lshl_b32 s6, s5, 7", f"s_and_b32 s7, {sP}, 3", "s_lshl_b32 s7, s7, 5", "s_add_u32 s6, s6, s7", f"s_lshl_b32 s7, {sS}, 1", "s_add_u32 s6, s6, s7",
      f"s_mul_i32 s6, s6, {OC_STR}", f"s_lshr_b32 s7, {sP}, 2", "s_lshl_b32 s7, s7, 7", "s_add_u32 s6, s6, s7", f"s_add_u32 s6, s6, {WS_OC}",
      f"v_lshrrev_b32 v246, 3, {vN}", f"v_mul_u32_u24 v246, {OC_STR}, v246", f"v_and_b32 v247, 7, {vN}", "v_lshl_add_u32 v246, v247, 4, v246", f"v_add_u32 {vCS}, s6, v246")
    I(f"v_lshlrev_b32 v254, 2, {vG}")
    OM = ["s[28:29]", "s[30:31]", "s[34:35]", "s[36:37]"]
    if own:
        S(f"s_cmp_eq_u32 {sW}, 0", f"s_cselect_b32 s4, {sS}, 255", "v_mov_b32 v247, 0x7ffffff0", f"v_lshlrev_b32 v232, 4, {vN}")
        for i in range(4):
            S(f"v_add_u32 v246, {4*i}, {vG}", f"v_cmp_eq_u32 {OM[i]}, s4, v246")
            I(f"v_cndmask_b32 v{228+i}, v252, v247, {OM[i]}")
    S(f"s_lshl_b32 s6, {sBK}, 3", f"s_add_u32 s6, s6, s33", f"s_mul_i32 s6, s6, {OC_STR}", f"s_add_u32 s6, s6, {WS_OC}",
      f"v_and_b32 v246, 31, {vLane}", "v_lshlrev_b32 v246, 4, v246", f"v_add_u32 {vOCg}, s6, v246",
      f"v_lshlrev_b32 v246, 5, {vB}", f"v_lshl_add_u32 v246, {vXb}, 4, v246", f"v_lshl_add_u32 {vX}, {vG}, 2, v246")
    vFS, vFG = vKA, vKB
    S(f"s_lshr_b32 s4, {sBK}, 4", "s_lshl_b32 s4, s4, 3", f"s_add_u32 s4, s4, {sCB}", "s_lshl_b32 s4, s4, 4",
      f"s_and_b32 s5, {sBK}, 15", f"s_lshl_b32 s6, {sW}, 1", "s_add_u32 s6, s6, s4", f"s_mul_i32 s6, s6, {FP_STR}",
      "s_lshl_b32 s7, s5, 7", "s_add_u32 s6, s6, s7", f"s_add_u32 s6, s6, {WS_FP}")
    S(f"v_lshrrev_b32 v246, 3, {vN}", f"v_mul_u32_u24 v246, {FP_STR}, v246", f"v_and_b32 v247, 7, {vN}", "v_lshl_add_u32 v246, v247, 4, v246", f"v_add_u32 {vFS}, s6, v246")
    S("s_add_u32 s6, s4, s5", f"s_mul_i32 s6, s6, {FP_STR}", f"s_add_u32 s6, s6, {WS_FP}")
    S(f"v_lshlrev_b32 v246, 4, {vLane}", f"v_add_u32 {vFG}, s6, v246")
    if opt.get("pretouch"):
        pm = opt["pretouch"].replace("_", " ")
        S(f"s_cmp_gt_u32 {sW}, 1", "s_cbranch_scc1 L_npt")
        I0(f"buffer_load_dwordx2 {vr(WO,2)}, v253, {sWS}, 0 offen {pm}"); A.vm.pop()
        for i in range(4):
            I0(f"buffer_load_dwordx4 {vr(WO)}, v252, {sWS}, 0 offen offset:{1024*i} {pm}"); A.vm.pop()
        A.label("L_npt")
    for j in range(1, 5):
        pv(j, OA, j == 1)
        if wolate == j:
            for u in range(wosplit): loadWO(u)
    stamp("PV done")
    DG, LG, TT = 96, 112, 144
    prepoll = opt.get("prepoll", 0)
    if prepoll:
        S(f"s_cmp_gt_u32 {sW}, 1", "s_cbranch_scc1 L_npp")
        I(f"buffer_load_dwordx2 {vr(LG,2)}, v253, {sWS}, 0 offen sc1"); A.vm.pop()
        A.label("L_npp")
    publishO(0, OA, L_OA)
    I("s_barrier")
    stamp("A published")
    DG, LG, TT = 96, 112, 144
    cgm = opt.get("cgm", "sc1_nt").replace("_", " ")
    def cgather():
        I(f"buffer_load_dwordx2 {vr(LG,2)}, v253, {sWS}, 0 offen {cgm}")
        for i in range(4): I(f"buffer_load_dwordx4 {vr(DG+4*i)}, {f'v{228+i}' if own else 'v252'}, {sWS}, 0 offen offset:{1024*i} {cgm}")
    womid = max(opt.get("womid", 1), wosplit)
    S("s_mov_b32 s23, 0", "s_mov_b32 s24, 0", "s_mov_b32 s15, 0", (f"s_cmp_gt_u32 {sW}, {0 if opt.get('nob') else 1}" if not opt.get("abl",0)&1 else "s_cmp_eq_u32 s2, s2"), "s_cbranch_scc1 L_cng")
    if prepoll:
        S("s_waitcnt vmcnt(2)", f"v_cmp_ne_u32 vcc, v{LG+1}, {vT}", f"v_cmp_ne_u32 s[6:7], {sS}, {vN}", "s_and_b64 vcc, vcc, s[6:7]",
          "s_mov_b32 s24, 1", "s_cbranch_vccnz L_cng", "s_mov_b32 s24, 0")
    nvm = len(A.vm); cgather(); del A.vm[nvm:]
    if own: I(f"ds_read_b128 v[124:127], v232 offset:{L_MX}")
    A.label("L_cng")
    w0skip = opt.get("w0skip", 1)
    if w0skip: S(f"s_cmp_lt_u32 {sW}, {w0skip}", "s_cbranch_scc1 L_w0s")
    l0 = len(A.lines)
    nmid = loadWOn(opt.get("wom8", 5))
    midlines = A.lines[l0:]
    S((f"s_cmp_gt_u32 {sW}, 1" if not opt.get("abl",0)&1 else "s_cmp_eq_u32 s2, s2"), "s_cbranch_scc1 L_cskip")
    I(f"s_waitcnt vmcnt({nmid})")
    I("s_branch L_cchk")
    if w0skip:
        A.label("L_w0s")
        S("s_waitcnt vmcnt(0)", "s_branch L_cchk")
    nvm = len(A.vm)
    A.label("L_c")
    S("s_add_u32 s15, s15, 1", "s_cmp_gt_u32 s15, 1000000", "s_cbranch_scc1 L_cdo")
    if opt.get("slp", 0): I(f"s_sleep {opt.get('slp', 0)}")
    if not opt.get("fullretry", 1):
        I(f"buffer_load_dwordx2 {vr(LG,2)}, v253, {sWS}, 0 offen sc1")
        S("s_waitcnt vmcnt(0)", f"v_cmp_ne_u32 vcc, v{LG+1}, {vT}", "s_cbranch_vccnz L_c")
    cgather()
    I("s_waitcnt vmcnt(0)")
    A.label("L_cchk")
    if ts and opt.get("cst"):
        k0 = nts[0]; nts[0] = 20
        S("s_cmp_lg_u32 s15, 0", "s_cbranch_scc1 L_cst1"); stamp("first gather back"); A.label("L_cst1")
        nts[0] = 21; stamp("last gather back")
        I(f"v_writelane_b32 {vTS}, s15, 22")
        nts[0] = k0
    if own:
        I("s_waitcnt lgkmcnt(0)")
        for i in range(4):
            for j in range(4): I(f"v_cndmask_b32 v{DG+4*i+j}, v{DG+4*i+j}, v{124+j}, {OM[i]}")
    for i in range(4): chk4(DG+4*i, "v246", i == 0)
    S(f"v_cmp_ne_u32 vcc, v{LG+1}, {vT}", "s_or_b64 s[6:7], s[6:7], vcc", "s_cmp_eq_u64 s[6:7], 0", "s_cbranch_scc1 L_cdo")
    if not opt.get("cwait", 1): S("s_mov_b32 s24, 1", "s_cmp_eq_u32 s23, 0", "s_cbranch_scc1 L_cskip")
    I("s_branch L_c")
    A.label("L_cdo")
    I(f"v_mov_b32 v{TT}, v{LG}")
    for k in (8, 4, 2, 1): dpp("v_max_f32", TT, f"row_ror:{k}")
    S(f"v_sub_f32 v{LG}, v{LG}, v{TT}", f"v_exp_f32 v{LG}, v{LG}", f"v_mov_b32 v{TT+1}, v{LG}")
    for k in (8, 4, 2, 1): dpp("v_add_f32", TT+1, f"row_ror:{k}")
    S(f"v_rcp_f32 v{TT+1}, v{TT+1}", f"v_mul_f32 v{LG}, v{LG}, v{TT+1}")
    for i in range(4): I(f"ds_bpermute_b32 v{LG+2+i}, v254, v{LG} offset:{16*i}")
    for i in range(4): untag4(DG+4*i)
    I("s_waitcnt lgkmcnt(0)")
    AC = TT+4
    for j in range(4): I(f"v_mul_f32 v{AC+j}, v{LG+2}, v{DG+j}")
    for i in range(1, 4):
        for j in range(4): I(f"v_fmac_f32 v{AC+j}, v{LG+2+i}, v{DG+4*i+j}")
    xrow(AC)
    tag4(AC)
    I("s_mov_b64 exec, 0xffff")
    I(f"buffer_store_dwordx4 {vr(AC)}, {vCS}, {sWS}, 0 offen sc1")
    I("s_mov_b64 exec, -1")
    if ts and opt.get("cst"):
        k0 = nts[0]; nts[0] = 23; stamp("OC stored"); nts[0] = k0
    S("s_mov_b32 s24, 0", "s_cmp_lg_u32 s23, 0", "s_cbranch_scc1 L_cend")
    del A.vm[nvm:]
    A.label("L_cskip")
    I("s_barrier")
    stamp("C1 done")
    OG, OG0 = 120, 124
    early = opt.get("early", 0) and womid < 2 and opt.get("cwait", 1)
    if early: I(f"buffer_load_dwordx4 {vr(OG0)}, {vOCg}, {sWS}, 0 offen sc1", "GO0")
    if w0skip:
        S(f"s_cmp_ge_u32 {sW}, {w0skip}", "s_cbranch_scc1 L_w0d")
        for l in midlines: A.raw(l)
        A.label("L_w0d")
    loadWOn(8)
    S("s_mov_b32 s23, 1", "s_cmp_lg_u32 s24, 0", "s_cbranch_scc1 L_c")
    A.label("L_cend")
    if opt.get("fpt", 1):
        S(f"s_cmp_lg_u32 {sW}, 0", "s_cbranch_scc1 L_nfpt")
        fpm = opt.get("fpm", "sc1").replace("_", " ")
        I0(f"buffer_load_dwordx4 v[128:131], {vFG}, {sWS}, 0 offen {fpm}"); A.vm.pop()
        I0(f"buffer_load_dwordx4 v[128:131], {vFG}, {sWS}, 0 offen offset:1024 {fpm}"); A.vm.pop()
        A.label("L_nfpt")
    I(f"buffer_load_dwordx4 {vr(OG)}, {vOCg}, {sWS}, 0 offen sc1", "GO")
    def ofrags(og):
        untag4(og)
        S(f"v_cvt_pk_bf16_f32 v{TT+10}, v{og}, v{og+1}", f"v_cvt_pk_bf16_f32 v{TT+11}, v{og+2}, v{og+3}",
          f"ds_bpermute_b32 v{TT+8}, {vX}, v{TT+10}", f"ds_bpermute_b32 v{TT+9}, {vX}, v{TT+11}", "s_waitcnt lgkmcnt(0)")
        afrags(TT+8, 224)
    A.wait_vm("wo0"); transpose(WO)
    if early:
        A.wait_vm("GO0")
        chk4(OG0, "v246", True)
        S("s_cmp_eq_u64 s[6:7], 0", "s_cbranch_scc0 L_late")
        ofrags(OG0)
        projmm(WO, 224, SR, 0)
        A.wait_vm("wo1"); transpose(WO+16)
        projmm(WO, 224, SR, 1)
        I("s_branch L_pdone")
        A.label("L_late")
    A.wait_vm("wo1"); transpose(WO+16)
    stamp("wo arrived")
    I("s_mov_b32 s15, 0")
    A.wait_vm("GO")
    A.label("L_ochk")
    chk4(OG, "v246", True)
    if opt.get("abl",0)&2: I("s_mov_b64 s[6:7], 0")
    S("s_cmp_eq_u64 s[6:7], 0", "s_cbranch_scc1 L_ook", "s_add_u32 s15, s15, 1", "s_cmp_gt_u32 s15, 1000000", "s_cbranch_scc1 L_ook")
    nvm = len(A.vm)
    I(f"buffer_load_dwordx4 {vr(OG)}, {vOCg}, {sWS}, 0 offen sc1")
    S("s_waitcnt vmcnt(0)", "s_branch L_ochk")
    del A.vm[nvm:]
    A.label("L_ook")
    ofrags(OG)
    for u in range(2): projmm(WO, 224, SR, u)
    A.label("L_pdone")
    stamp("GO ok")
    write_acc(vRW, SR)
    barrier()
    red_publish(SR, vFS, "fst", local=True)
    stamp("F published")
    S(f"s_cmp_lg_u32 {sW}, 0", "s_cbranch_scc1 L_fin")
    S(f"s_and_b32 s4, {sBK}, 15", "s_lshr_b32 s5, s4, 2", "s_lshl_b32 s5, s5, 12", "s_and_b32 s4, s4, 3", "s_lshl_b32 s4, s4, 6", "s_add_u32 s5, s5, s4",
      f"s_lshr_b32 s4, {sBK}, 4", "s_lshl_b32 s4, s4, 11", "s_add_u32 s5, s5, s4", f"s_lshl_b32 s4, {sCB}, 8", "s_add_u32 s5, s5, s4")
    S(f"v_and_b32 v252, 7, {vLane}", "v_lshlrev_b32 v252, 3, v252", f"v_and_b32 v247, 1, {vG}", "v_lshl_add_u32 v252, v247, 2, v252",
      f"v_lshrrev_b32 v247, 1, {vG}", "v_lshl_add_u32 v252, v247, 1, v252", "v_add_u32 v252, s5, v252")
    I("s_mov_b32 s15, 0")
    A.label("L_fl")
    if opt.get("slpf", 0): I(f"s_sleep {opt.get('slpf')}")
    fgm = opt.get("fgm", "sc1_nt").replace("_", " ")
    I(f"buffer_load_dwordx4 {vr(DG)}, {vFG}, {sWS}, 0 offen {fgm}")
    I(f"buffer_load_dwordx4 {vr(DG+4)}, {vFG}, {sWS}, 0 offen offset:1024 {fgm}")
    I("s_waitcnt vmcnt(0)")
    chk4(DG, "v246", True); chk4(DG+4, "v246", False)
    if opt.get("abl",0)&4: I("s_mov_b64 s[6:7], 0")
    S("s_cmp_eq_u64 s[6:7], 0", "s_cbranch_scc1 L_fok", "s_add_u32 s15, s15, 1", "s_cmp_gt_u32 s15, 1000000", "s_cbranch_scc0 L_fl")
    A.label("L_fok")
    stamp("F ok")
    untag4(DG); untag4(DG+4)
    S(f"v_pk_add_f32 {vr(DG,2)}, {vr(DG,2)}, {vr(DG+4,2)}", f"v_pk_add_f32 {vr(DG+2,2)}, {vr(DG+2,2)}, {vr(DG+6,2)}",
      f"v_permlane32_swap_b32 v{DG}, v{DG+1}", f"v_permlane32_swap_b32 v{DG+2}, v{DG+3}",
      f"v_add_f32 v{DG}, v{DG}, v{DG+1}", f"v_add_f32 v{DG+2}, v{DG+2}, v{DG+3}",
      f"v_permlane16_swap_b32 v{DG}, v{DG+2}", f"v_add_f32 v{DG}, v{DG}, v{DG+2}")
    dpp("v_add_f32", DG, "row_ror:8")
    I(f"v_cvt_pk_bf16_f32 v{DG}, v{DG}, v{DG}")
    S("s_mov_b32 exec_lo, 0x00ff00ff", "s_mov_b32 exec_hi, 0x00ff00ff")
    I(f"buffer_store_short v{DG}, v252, {sOUT}, 0 offen")
    S("s_mov_b64 exec, -1", "s_cmp_lg_u32 s2, 0", "s_cbranch_scc1 L_fin")
    S("v_mov_b32 v246, 0", f"v_mov_b32 v247, {sEP1}", "s_mov_b64 exec, 1")
    I(f"buffer_store_dword v247, v246, {sWS}, 0 offen")
    I("s_mov_b64 exec, -1")
    A.label("L_fin")
    if ts and opt.get("dbg"):
        nts[0] = 14; stamp("end")
        S(f"v_readlane_b32 s4, {vTS}, 0", "s_not_b32 s4, s4", f"v_writelane_b32 {vTS}, s4, 15")
        S("s_mov_b32 s20, s38", "s_mov_b32 s21, s39", "s_mov_b32 s22, 256", "s_mov_b32 s23, 0x00020000")
        S(f"v_lshlrev_b32 v246, 2, {vLane}", "s_mov_b64 exec, 0xffff")
        I(f"buffer_atomic_umax {vTS}, v246, s[20:23], 0 offen")
    elif ts:
        nts[0] = 31; stamp("end")
        S("s_lshl_b32 s4, s2, 3", f"s_add_u32 s4, s4, {sW}", "s_lshl_b32 s4, s4, 7", f"s_add_u32 s4, s4, {WS_TS}",
          f"v_lshlrev_b32 v246, 2, {vLane}", "v_add_u32 v246, s4, v246", "s_mov_b32 exec_lo, -1", "s_mov_b32 exec_hi, 0")
        I(f"buffer_store_dword {vTS}, v246, {sWS}, 0 offen")
    A.raw("L_end:")
    I("s_endpgm")
    A.raw(f""".section .rodata,"a"
.p2align 6
.amdhsa_kernel {NAME}_kernel
  .amdhsa_next_free_vgpr 256
  .amdhsa_next_free_sgpr 102
  .amdhsa_accum_offset 256
  .amdhsa_group_segment_fixed_size 0
  .amdhsa_kernarg_size 104
  .amdhsa_user_sgpr_count 2
  .amdhsa_user_sgpr_kernarg_segment_ptr 1
  .amdhsa_system_sgpr_workgroup_id_x 1
.end_amdhsa_kernel""")
    return A.text()

if __name__ == "__main__":
    ts = "--ts" in sys.argv
    out = sys.argv[1]
    opt = {}
    for a in sys.argv[2:]:
        if "=" in a:
            k, v = a.split("="); opt[k] = int(v) if v.isdigit() else v
    open(out, "w").write(gen(ts=ts, opt=opt))
```
